```python
import torch

def _softmax(x, axis=-1):
    return torch.softmax(x, dim=axis)
def _gelu(x):
    return torch.nn.functional.gelu(x, approximate="tanh")
def _silu(x):
    return torch.nn.functional.silu(x)
def _sigmoid(x):
    return torch.sigmoid(x)
def _layernorm(x, axis=-1, eps=1e-5):
    m = x.mean(dim=axis, keepdim=True)
    v = x.var(dim=axis, keepdim=True, unbiased=False)
    return (x - m) / torch.sqrt(v + eps)
def _scatter_add(tgt, idx, src, axis=0):
    return tgt.clone().index_add_(axis, idx, src)
def _segment_sum(src, seg, n):
    out = torch.zeros((n,) + src.shape[1:], dtype=src.dtype)
    return out.index_add_(0, seg, src)
def _pad(x, pw):
    flat = tuple(v for pair in reversed(pw) for v in pair)
    return torch.nn.functional.pad(x, flat)

kernel_name = 'recurrent_scan__gqa_block_cached__geglu_ffn__decode'

def setup_inputs():

    _w = (lambda a: (lambda t: t.to(torch.bfloat16) if t.is_floating_point() else t)(torch.as_tensor(a)))
    def _A_setup():
        B, Sq, D = 1, 1, 640
        Hq, Hkv, Sk, Dh = 32, 32, 32768, 128
        assert Hq % Hkv == 0, (Hq, Hkv)
        return {
            "x": _w((lambda *s: torch.randn(*s, dtype=torch.bfloat16) * 0.05)(B, Sq, D)),
            "k_cache": _w((lambda *s: torch.randn(*s, dtype=torch.bfloat16) * 3.2)(B, Hkv, Sk, Dh)),
            "v_cache": _w((lambda *s: torch.randn(*s, dtype=torch.bfloat16) * 0.8)(B, Hkv, Sk, Dh)),
            "wq": _w((lambda *s: torch.randn(*s, dtype=torch.bfloat16) * 3.2)(D, Hq * Dh) * (D ** -0.5)),
            "wo": _w((lambda *s: torch.randn(*s, dtype=torch.bfloat16) * 0.8)(Hq * Dh, D) * ((Hq * Dh) ** -0.5)),
        }
    _A_in = _A_setup()

    def _B_setup():
        B, S, D, F = 1, 1, 640, 1728
        return {
            "x": _w((lambda *s: torch.randn(*s, dtype=torch.bfloat16) * 0.05)(B, S, D)),
            "w_gate": _w((lambda *s: torch.randn(*s, dtype=torch.bfloat16) * 0.4)(D, F)),
            "w_up": _w((lambda *s: torch.randn(*s, dtype=torch.bfloat16) * 0.4)(D, F)),
            "w_down": _w((lambda *s: torch.randn(*s, dtype=torch.bfloat16) * 0.4)(F, D)),
        }
    _B_in = _B_setup()

    return {
        "A_x": _A_in["x"],
        "A_k_cache": _A_in["k_cache"],
        "A_v_cache": _A_in["v_cache"],
        "A_wq": _A_in["wq"],
        "A_wo": _A_in["wo"],
        "B_x": _B_in["x"],
        "B_w_gate": _B_in["w_gate"],
        "B_w_up": _B_in["w_up"],
        "B_w_down": _B_in["w_down"],
    }

def reference(A_x, A_k_cache, A_v_cache, A_wq, A_wo, B_x, B_w_gate, B_w_up, B_w_down):
    def _A_ref(x, k_cache, v_cache, wq, wo):
        B, Sq, D = x.shape
        Hq, Dh = 32, 128
        Hkv = k_cache.shape[1]
        rep = Hq // Hkv
        q = (lambda x, *d: x.permute(*d))((x @ wq).reshape(B, Sq, Hq, Dh), 0, 2, 1, 3)
        k = (lambda x, n, axis: torch.repeat_interleave(x, n, dim=axis))(k_cache, rep, axis=1)
        v = (lambda x, n, axis: torch.repeat_interleave(x, n, dim=axis))(v_cache, rep, axis=1)
        scores = torch.einsum("bhqd,bhkd->bhqk", q, k) * (Dh ** -0.5)
        p = _softmax(scores, axis=-1)
        o = torch.einsum("bhqk,bhkd->bhqd", p, v)
        return (lambda x, *d: x.permute(*d))(o, 0, 2, 1, 3).reshape(B, Sq, Hq * Dh) @ wo

    def _B_ref(x, w_gate, w_up, w_down):
        return (_gelu(x @ w_gate) * (x @ w_up)) @ w_down

    x = A_x
    xn = _layernorm(x, axis=-1)
    s = _A_ref(xn, A_k_cache, A_v_cache, A_wq, A_wo)
    g = _silu(_B_ref(xn, B_w_gate, B_w_up, B_w_down))
    return x + s * g
```

```python
import re

TRANS = ("v_exp_f32","v_log_f32","v_rcp_f32","v_rsq_f32","v_sqrt_f32","v_sin_f32","v_cos_f32")

def _regs(tok):
    tok = tok.strip()
    neg = tok.lstrip("-")
    if neg.startswith("abs(") or neg.startswith("|"):
        neg = neg.replace("abs(","").replace(")","").replace("|","")
    tok = neg
    m = re.fullmatch(r"([vs])(\d+)", tok)
    if m: return [m.group(1)+m.group(2)]
    m = re.fullmatch(r"([vs])\[(\d+):(\d+)\]", tok)
    if m: return [m.group(1)+str(i) for i in range(int(m.group(2)), int(m.group(3))+1)]
    if tok == "vcc": return ["vcc"]
    if tok == "exec": return ["exec"]
    if tok == "m0": return ["m0"]
    return []

class Ins:
    def __init__(self, text):
        self.text = text
        t = text.split(";")[0].strip()
        parts = t.split(None, 1)
        self.op = parts[0]
        rest = parts[1] if len(parts) > 1 else ""
        ops = []; depth = 0; cur = ""
        for ch in rest:
            if ch == "[": depth += 1
            if ch == "]": depth -= 1
            if ch == "," and depth == 0: ops.append(cur); cur = ""
            else: cur += ch
        if cur.strip(): ops.append(cur)
        mods = ""
        if ops:
            l = ops[-1].strip().split(None, 1)
            ops[-1] = l[0]
            if len(l) > 1: mods = l[1]
        self.ops = [o.strip() for o in ops]
        self.mods = mods
        op = self.op
        self.valu = op.startswith("v_")
        self.salu = op.startswith("s_")
        self.vmem = op.startswith("buffer_") or op.startswith("global_")
        self.ds = op.startswith("ds_")
        self.dpp = op.endswith("_dpp")
        self.perml = op.startswith("v_permlane")
        self.trans = any(op.startswith(x) for x in TRANS)
        self.dot = op.startswith("v_dot")
        self.rdlane = op.startswith("v_readfirstlane") or op.startswith("v_readlane")
        R = [_regs(o) for o in self.ops]
        self.dst = []; self.src = []; self.srcC = []
        self.store_data = []
        if self.valu:
            if self.perml:
                self.dst = R[0] + R[1]; self.src = R[0] + R[1]
            else:
                self.dst = R[0]
                k = 1
                if op.startswith(("v_add_co","v_addc_co","v_sub_co")):
                    self.dst = R[0] + R[1]; k = 2
                self.src = [r for x in R[k:] for r in x]
                if op.startswith(("v_fmac","v_dot2c")):
                    self.srcC = R[0]
                elif op.startswith("v_dot2_"):
                    self.srcC = R[3]; self.src = R[1] + R[2]
                if self.dpp and ("bank_mask:0xf" not in mods or "row_mask:0xf" not in mods):
                    self.srcC = R[0]
                if op.startswith("v_cndmask") and len(self.ops) == 3:
                    self.src += ["vcc"]
        elif self.vmem:
            if "store" in op:
                if op.startswith("global"):
                    self.src = [r for x in R for r in x]; data = R[1]
                else:
                    self.src = [r for x in R for r in x]; data = R[0]
                if len(data) >= 3: self.store_data = data
            else:
                self.dst = R[0]; self.src = [r for x in R[1:] for r in x]
                if "atomic" in op: self.src += R[0]
        elif self.ds:
            if "write" in op or "add" in op:
                self.src = [r for x in R for r in x]
            else:
                self.dst = R[0]; self.src = [r for x in R[1:] for r in x]
        elif self.salu:
            if R and not op.startswith(("s_cmp","s_cbranch","s_branch","s_waitcnt","s_nop","s_barrier","s_sleep","s_endpgm","s_setprio")):
                self.dst = R[0]; self.src = [r for x in R[1:] for r in x]
            else:
                self.src = [r for x in R for r in x]
        self.states = 1
        if op == "s_nop": self.states = int(self.ops[0], 0) + 1

def need(prev, cur):
    n = 0
    allsrc = set(cur.src) | set(cur.srcC)
    if prev.valu:
        pd = set(prev.dst)
        vd = {r for r in pd if r[0] == "v" and r != "vcc"}
        sd = pd - vd
        if cur.valu:
            if cur.dpp and vd & allsrc: n = max(n, 2)
            if cur.perml and vd & allsrc: n = max(n, 2)
            if prev.trans and not cur.trans and vd & allsrc: n = max(n, 1)
            if cur.rdlane and vd & allsrc: n = max(n, 1)
            if sd & allsrc: n = max(n, 2)
            if "exec" in sd: n = max(n, 5)
        if cur.vmem and sd & allsrc: n = max(n, 5)
        if prev.dot:
            if cur.op == prev.op:
                if vd & set(cur.src): n = max(n, 3)
            elif (cur.valu or cur.vmem or cur.ds) and (vd & allsrc or vd & set(cur.dst)):
                n = max(n, 3)
    if prev.store_data and (cur.valu or cur.ds or cur.vmem) and set(prev.store_data) & set(cur.dst):
        n = max(n, 2)
    return n

class Asm:
    def __init__(self):
        self.lines = []
        self.hist = []
        self.nins = 0
        self.nnop = 0
    def raw(self, s): self.lines.append(s)
    def label(self, name, fence=True):
        self.lines.append(name + ":")
    def fence(self, n=3):
        worst = 0; dist = 0
        for p in reversed(self.hist[-6:]):
            w = 0
            if p.valu:
                w = 2
                if p.dot: w = 3
                if any(r[0] == "s" or r == "vcc" for r in p.dst): w = 5
            if p.store_data: w = max(w, 2)
            worst = max(worst, w - dist)
            dist += p.states
        if worst > 0: self("s_nop %d" % (worst - 1))
    def __call__(self, text):
        ins = Ins(text)
        dist = 0; pad = 0
        for p in reversed(self.hist[-8:]):
            pad = max(pad, need(p, ins) - dist)
            dist += p.states
            if dist >= 6: break
        if pad > 0:
            nop = Ins("s_nop %d" % (pad - 1))
            self.lines.append("    " + nop.text); self.hist.append(nop); self.nnop += 1
        self.lines.append("    " + text)
        self.hist.append(ins); self.nins += 1
    def text(self): return "\n".join(self.lines) + "\n"
```

```python
import sys, json, struct
from asmlib import Asm
KN = "recurrent_scan__gqa_block_cached__geglu_ffn__decode_kernel"

def f32(x): return "0x%08x" % struct.unpack("<I", struct.pack("<f", x))[0]

HEADER = open("recurrent_scan__gqa_block_cached__geglu_ffn__decode.s.ref").read().split("; Override launch")[0]

NATT, NFFN = 256, 27
NWG = NATT + NFFN
L_PART, L_Q, L_ML, L_WO = 0, 2560, 2816, 3072
LDS_BYTES = L_WO + 32768
W_EPOCH, W_Q, W_O, W_Z, W_Y, W_SIZE = 4, 0x1000, 0x80000, 0x100000, 0x140000, 0x180000
LOG2E = 1.4426950408889634
SPIN = 200000

def bitrev4(j): return ((j&1)<<3)|((j&2)<<1)|((j&4)>>1)|((j&8)>>3)

def gen(D=5, D0=6, diag=False):
    a = Asm()
    a.raw(HEADER.rstrip())
    a.raw(f"; @launch grid=({NWG},1,1) block=(320,1,1) lds={LDS_BYTES}")
    a.raw('.amdgcn_target "amdgcn-amd-amdhsa--gfx950"')
    a.raw(".text"); a.raw(f".globl {KN}"); a.raw(".p2align 8"); a.raw(f".type {KN},@function"); a.raw(f"{KN}:")
    FULL = "row_mask:0xf bank_mask:0xf"
    sW = "s3"
    SK, SV, SX, SWT, SWS, SOUT = "s[28:31]", "s[32:35]", "s[36:39]", "s[40:43]", "s[44:47]", "s[48:51]"
    sH, sS, sT, sTag, sCnt = "s52", "s53", "s54", "s55", "s56"
    sMC, sMA = "s[58:59]", "s[60:61]"
    sL2E, sScale = "s62", "s63"
    sSpin = "s57"
    def stamp(k):
        if diag:
            a(f"s_memrealtime s[{70+2*k}:{71+2*k}]")
    def srd(base, lo, size):
        a(f"s_mov_b32 s{base}, s{lo}"); a(f"s_mov_b32 s{base+1}, s{lo+1}")
        a(f"s_mov_b32 s{base+2}, {size}"); a(f"s_mov_b32 s{base+3}, 0x20000")
    def allreduce(op, v, t):
        for r in (8,4,2,1):
            a(f"{op}_dpp {v}, {v}, {v} row_ror:{r} {FULL}")
        a(f"v_mov_b32 {t}, {v}"); a(f"v_permlane16_swap_b32 {v}, {t}"); a(f"{op} {v}, {v}, {t}")
        a(f"v_mov_b32 {t}, {v}"); a(f"v_permlane32_swap_b32 {v}, {t}"); a(f"{op} {v}, {v}, {t}")
    def rowreduce8(acc):
        for e in range(4): a(f"v_permlane32_swap_b32 {acc[e]}, {acc[e+4]}")
        for e in range(4): a(f"v_add_f32 {acc[e]}, {acc[e]}, {acc[e+4]}")
        for e in range(2): a(f"v_permlane16_swap_b32 {acc[e]}, {acc[e+2]}")
        for e in range(2): a(f"v_add_f32 {acc[e]}, {acc[e]}, {acc[e+2]}")
    def ln_stats(x0, t0):
        S, Tm = f"v{t0}", f"v{t0+1}"
        u = [f"v{t0+2+k}" for k in range(10)]
        for k in range(5):
            a(f"v_lshlrev_b32 {u[2*k]}, 16, v{x0+k}")
            a(f"v_and_b32 {u[2*k+1]}, 0xffff0000, v{x0+k}")
        a(f"v_add_f32 {S}, {u[0]}, {u[1]}"); a(f"v_add_f32 {Tm}, {u[2]}, {u[3]}")
        for k in range(4, 10, 2):
            a(f"v_add_f32 {S}, {S}, {u[k]}"); a(f"v_add_f32 {Tm}, {Tm}, {u[k+1]}")
        a(f"v_add_f32 {S}, {S}, {Tm}")
        allreduce("v_add_f32", S, Tm)
        a(f"v_mul_f32 {S}, {f32(1.0/640)}, {S}")
        for k in range(10): a(f"v_sub_f32 {u[k]}, {u[k]}, {S}")
        a(f"v_mul_f32 {Tm}, {u[0]}, {u[0]}"); a(f"v_mul_f32 {u[1]}, {u[1]}, {u[1]}")
        for k in range(2, 10, 2):
            a(f"v_fmac_f32 {Tm}, {u[k]}, {u[k]}"); a(f"v_fmac_f32 {u[1]}, {u[k+1]}, {u[k+1]}")
        a(f"v_add_f32 {Tm}, {Tm}, {u[1]}")
        allreduce("v_add_f32", Tm, u[0])
        a(f"v_mul_f32 {Tm}, {f32(1.0/640)}, {Tm}")
        a(f"v_cvt_pk_bf16_f32 {S}, 0, {S}")
        a(f"v_cvt_pk_bf16_f32 {Tm}, 0, {Tm}")
        a(f"v_add_f32 {Tm}, {f32(1e-5)}, {Tm}")
        a(f"v_cvt_pk_bf16_f32 {Tm}, 0, {Tm}")
        a(f"v_sqrt_f32 {Tm}, {Tm}")
        a(f"v_cvt_pk_bf16_f32 {Tm}, 0, {Tm}")
        a(f"v_rcp_f32 {u[0]}, {Tm}")
    def ln_apply(xr, t0, lo, hi, tmp):
        a(f"v_lshlrev_b32 {xr}, 16, {xr}")
        a(f"v_sub_f32 {xr}, {xr}, v{t0}")
        a(f"v_cvt_pk_bf16_f32 {xr}, 0, {xr}")
        a(f"v_mul_f32 {tmp}, {xr}, v{t0+2}")
        a(f"v_fma_f32 {xr}, -{tmp}, v{t0+1}, {xr}")
        a(f"v_fmac_f32 {tmp}, {xr}, v{t0+2}")
        a(f"v_cvt_pk_bf16_f32 {hi}, 0, {tmp}")
        a(f"v_cvt_pk_bf16_f32 {lo}, {tmp}, 0")
    def gemv_load(acc, lo, hi, r, lane):
        for e in range(4):
            a(f"v_dot2c_f32_bf16_dpp {acc[2*e]}, {lo}, v{r+e} row_newbcast:{lane} {FULL}")
            a(f"v_dot2c_f32_bf16_dpp {acc[2*e+1]}, {hi}, v{r+e} row_newbcast:{lane} {FULL}")
    def tagcheck(tags, T, mn, mx):
        a(f"v_min3_u32 {mn}, {tags[0]}, {tags[1]}, {T}"); a(f"v_max3_u32 {mx}, {tags[0]}, {tags[1]}, {T}")
        for k in range(2, len(tags), 2):
            a(f"v_min3_u32 {mn}, {tags[k]}, {tags[k+1]}, {mn}"); a(f"v_max3_u32 {mx}, {tags[k]}, {tags[k+1]}, {mx}")
        a(f"v_cmp_ne_u32 vcc, {mn}, {mx}")
    def retry(label, done):
        a(f"s_cbranch_vccz {done}")
        a(f"s_sub_u32 {sSpin}, {sSpin}, 1")
        a(f"s_cmp_gt_i32 {sSpin}, 0")
        a(f"s_cbranch_scc1 {label}")
        a.label(done)

    ACC = [f"v{10+e}" for e in range(8)]
    vM, vL, vPlo, vPhi = "v18", "v19", "v20", "v21"
    KR, VR = 32, 96
    voff = ["v2","v3","v4","v5"]
    def issue(i, sbase):
        t, j = i//16, i%16
        r = (KR if t == 0 else VR) + 4*j
        a(f"buffer_load_dwordx4 v[{r}:{r+3}], {voff[j//4]}, {SK if t==0 else SV}, {sbase} offen offset:{(j%4)*1024} nt")

    stamp(0)
    a("s_load_dwordx16 s[4:19], s[0:1], 0")
    a("s_load_dwordx8 s[20:27], s[0:1], 64")
    a(f"s_cmp_ge_u32 s2, {NWG}")
    a("s_cbranch_scc1 L_end")
    a("v_and_b32 v1, 63, v0")
    a("v_lshrrev_b32 v22, 6, v0")
    a("v_lshlrev_b32 v2, 4, v1")
    a(f"v_readfirstlane_b32 {sW}, v22")
    a("v_lshlrev_b32 v22, 2, v1")
    a("v_lshrrev_b32 v6, 4, v1")
    a("v_and_b32 v7, 15, v1")
    a(f"s_mov_b32 {sSpin}, {SPIN}")
    a(f"s_mov_b32 {sL2E}, {f32(LOG2E)}")
    a(f"s_cmp_ge_u32 s2, {NATT}")
    a("s_cbranch_scc1 L_ffn")
    a("v_add_u32 v3, 4096, v2"); a("v_add_u32 v4, 32768, v2"); a("v_add_u32 v5, 36864, v2")
    a(f"s_lshr_b32 {sH}, s2, 3"); a(f"s_and_b32 {sS}, s2, 7")
    a("v_and_b32 v8, 3, v7"); a("v_lshl_add_u32 v8, v8, 2, v6"); a("v_lshlrev_b32 v8, 1, v8")
    a("v_lshlrev_b32 v9, 4, v7"); a("v_lshl_add_u32 v9, v6, 13, v9")
    a(f"s_mul_i32 s64, {sS}, 80"); a(f"s_lshl_b32 s65, {sW}, 4"); a("s_add_u32 s64, s64, s65")
    a("s_lshl_b32 s65, s64, 1")
    a("s_lshl_b32 s64, s64, 13"); a(f"s_lshl_b32 s66, {sH}, 8"); a("s_add_u32 s64, s64, s66")
    a(f"s_lshl_b32 {sT}, s2, 20"); a(f"s_lshl_b32 s66, {sW}, 13"); a(f"s_add_u32 {sT}, {sT}, s66")
    a(f"s_cmp_eq_u32 {sW}, 4"); a("s_cselect_b32 s67, 0, 0x10000000")
    a("s_waitcnt lgkmcnt(0)")
    a(f"s_load_dword {sTag}, s[26:27], {W_EPOCH}")
    srd(36, 4, 1280); srd(40, 10, 640*4096*2)
    for k in range(5): a(f"buffer_load_dword v{160+k}, v22, {SX}, 0 offen offset:{256*k}")
    a(f"buffer_load_ushort v165, v8, {SX}, s65 offen")
    for k in range(4):
        r = VR + 48 + 4*k
        a(f"buffer_load_dwordx4 v[{r}:{r+3}], v9, {SWT}, s64 offen nt")
        if k < 3: a("s_add_u32 s64, s64, 32768")
    srd(28, 6, "s67")
    for i in range(D0): issue(i, sT)
    srd(32, 8, "s67"); srd(44, 26, W_SIZE)
    a("s_mov_b32 s58, 0xcccccccc"); a("s_mov_b32 s59, 0xcccccccc")
    a("s_mov_b32 s60, 0xaaaaaaaa"); a("s_mov_b32 s61, 0xaaaaaaaa")
    a(f"s_mov_b32 {sScale}, {f32(128**-0.5)}")
    for e in range(8): a(f"v_mov_b32 {ACC[e]}, 0")
    a("v_lshlrev_b32 v166, 5, v7"); a("v_lshl_add_u32 v166, v6, 3, v166")
    a(f"s_lshl_b32 s66, {sW}, 9"); a("v_add_u32 v166, s66, v166")
    a("v_lshlrev_b32 v167, 4, v7")
    a(f"s_waitcnt vmcnt({D0+5})")
    ln_stats(160, 100)
    a(f"s_waitcnt vmcnt({D0+4})")
    ln_apply("v165", 100, vPlo, vPhi, "v22")
    for k in range(4):
        a(f"s_waitcnt vmcnt({D0+3-k})")
        gemv_load(ACC, vPlo, vPhi, VR+48+4*k, k)
    rowreduce8(ACC)
    a(f"ds_write_b64 v166, v[10:11] offset:{L_PART}")
    a("s_waitcnt lgkmcnt(0)")
    a("s_barrier")
    a(f"s_add_u32 {sTag}, {sTag}, 1")
    a(f"s_cmp_eq_u32 {sW}, 4")
    a("s_cbranch_scc1 L_helper")
    stamp(2)
    for i in range(D0, 32):
        a(f"s_waitcnt vmcnt({D-1})")
        issue(i, sT)
    for e in range(8): a(f"v_mov_b32 {ACC[e]}, 0")
    a(f"v_mov_b32 {vM}, {f32(-3.0e38)}"); a(f"v_mov_b32 {vL}, 0")
    a(f"s_mov_b32 {sCnt}, 0")
    stamp(3)
    a("s_barrier")
    a(f"ds_read_b128 v[6:9], v167 offset:{L_Q}")
    stamp(4)
    a("s_waitcnt lgkmcnt(0)")
    a.label("L_loop")
    a(f"s_add_u32 {sT}, {sT}, 65536")
    a(f"s_cmp_eq_u32 {sCnt}, 15")
    a("s_cselect_b32 s30, 0, s30"); a("s_cselect_b32 s34, 0, s34")
    A_ = ["v22","v23"]; B_ = ["v24","v25"]; C_ = ["v26","v27"]; D_ = ["v28","v29"]; T0, T1 = "v30", "v31"
    for j in range(16):
        r = KR + 4*j; t = A_[j&1]
        a(f"v_dot2_f32_bf16 {t}, v{r}, v6, 0")
        for e in range(1,4): a(f"v_dot2_f32_bf16 {t}, v{r+e}, v{6+e}, {t}")
        a(f"s_waitcnt vmcnt({D-1})")
        issue(j, sT)
        if j & 1:
            b = B_[(j>>1)&1]
            a(f"v_add_f32_dpp {b}, {A_[0]}, {A_[0]} row_ror:8 row_mask:0xf bank_mask:0x3")
            a(f"v_add_f32_dpp {b}, {A_[1]}, {A_[1]} row_ror:8 row_mask:0xf bank_mask:0xc")
            if j & 2:
                c = C_[(j>>2)&1]
                a(f"v_add_f32_dpp {c}, {B_[0]}, {B_[0]} row_half_mirror row_mask:0xf bank_mask:0x5")
                a(f"v_add_f32_dpp {c}, {B_[1]}, {B_[1]} row_half_mirror row_mask:0xf bank_mask:0xa")
                if j & 4:
                    d = D_[(j>>3)&1]
                    a(f"v_add_f32_dpp {T0}, {C_[0]}, {C_[0]} quad_perm:[2,3,0,1] {FULL}")
                    a(f"v_add_f32_dpp {T1}, {C_[1]}, {C_[1]} quad_perm:[2,3,0,1] {FULL}")
                    a(f"v_cndmask_b32 {d}, {T0}, {T1}, {sMC}")
    a(f"v_add_f32_dpp {T0}, {D_[0]}, {D_[0]} quad_perm:[1,0,3,2] {FULL}")
    a(f"v_add_f32_dpp {T1}, {D_[1]}, {D_[1]} quad_perm:[1,0,3,2] {FULL}")
    S = "v22"; MX = "v23"; AL = "v24"
    a(f"v_cndmask_b32 {S}, {T0}, {T1}, {sMA}")
    a(f"v_cvt_pk_bf16_f32 {S}, 0, {S}")
    a(f"v_mul_f32 {S}, {sScale}, {S}")
    a(f"v_cvt_pk_bf16_f32 {S}, 0, {S}")
    a(f"v_max_f32 {MX}, {S}, {vM}")
    allreduce("v_max_f32", MX, T0)
    a(f"v_sub_f32 {S}, {S}, {MX}"); a(f"v_sub_f32 {AL}, {vM}, {MX}")
    a(f"v_mul_f32 {S}, {sL2E}, {S}"); a(f"v_mul_f32 {AL}, {sL2E}, {AL}")
    a(f"v_exp_f32 {S}, {S}"); a(f"v_exp_f32 {AL}, {AL}")
    a(f"v_mov_b32 {vM}, {MX}")
    a(f"v_cvt_pk_bf16_f32 {vPhi}, 0, {S}"); a(f"v_cvt_pk_bf16_f32 {vPlo}, {S}, 0")
    for e in range(8): a(f"v_mul_f32 {ACC[e]}, {ACC[e]}, {AL}")
    a(f"v_fma_f32 {vL}, {vL}, {AL}, {vPhi}")
    for j in range(16):
        gemv_load(ACC, vPlo, vPhi, VR+4*j, bitrev4(j))
        a(f"s_waitcnt vmcnt({D-1})")
        issue(16+j, sT)
    a(f"s_add_u32 {sCnt}, {sCnt}, 1")
    a(f"s_cmp_lt_u32 {sCnt}, 16")
    a("s_cbranch_scc1 L_loop")
    stamp(5)
    rowreduce8(ACC)
    a(f"ds_write_b64 v166, v[10:11] offset:{L_PART}")
    allreduce("v_add_f32", vL, T0)
    a(f"v_mul_f32 {vM}, {sL2E}, {vM}")
    a(f"s_lshl_b32 s66, {sW}, 3"); a("v_mov_b32 v22, s66")
    a(f"ds_write_b64 v22, v[18:19] offset:{L_ML}")
    a("v_lshlrev_b32 v23, 3, v1")
    a("v_mov_b32 v24, 0")
    a(f"s_lshl_b32 s66, s2, 11"); a(f"s_add_u32 s66, s66, {W_O}")
    a("s_waitcnt vmcnt(0) lgkmcnt(0)")
    a("s_barrier")
    a(f"s_cmp_lg_u32 {sW}, 0")
    a("s_cbranch_scc1 L_hop1")
    a(f"ds_read_b128 v[104:107], v24 offset:{L_ML}"); a(f"ds_read_b128 v[108:111], v24 offset:{L_ML+16}")
    for w in range(4): a(f"ds_read_b64 v[{112+2*w}:{113+2*w}], v23 offset:{L_PART+512*w}")
    a(f"v_mov_b32 v121, {sTag}"); a(f"v_mov_b32 v123, {sTag}"); a(f"v_mov_b32 v125, {sTag}"); a(f"v_mov_b32 v127, {sTag}")
    a("s_waitcnt lgkmcnt(4)")
    a("v_max3_f32 v124, v104, v106, v108"); a("v_max_f32 v124, v124, v110")
    for w in range(4): a(f"v_sub_f32 v{104+2*w}, v{104+2*w}, v124")
    for w in range(4): a(f"v_exp_f32 v{104+2*w}, v{104+2*w}")
    a("s_waitcnt lgkmcnt(0)")
    a("v_mul_f32 v120, v104, v112"); a("v_mul_f32 v122, v104, v113"); a("v_mul_f32 v126, v104, v105")
    for w in range(1,4):
        a(f"v_fmac_f32 v120, v{104+2*w}, v{112+2*w}"); a(f"v_fmac_f32 v122, v{104+2*w}, v{113+2*w}")
        a(f"v_fmac_f32 v126, v{104+2*w}, v{105+2*w}")
    a(f"buffer_store_dwordx4 v[120:123], v2, {SWS}, s66 offen sc1")
    a("s_mov_b64 exec, 1")
    a(f"buffer_store_dwordx4 v[124:127], v2, {SWS}, s66 offen offset:1024 sc1")
    a("s_mov_b64 exec, -1")
    a.label("L_hop1")
    stamp(6)
    a(f"s_cmp_ge_u32 {sS}, 5")
    a("s_cbranch_scc1 L_fin")
    a(f"s_lshl_b32 s66, {sW}, 13"); a("v_add_u32 v22, s66, v2")
    for q in range(8): a(f"ds_read_b128 v[{32+4*q}:{35+4*q}], v22 offset:{L_WO+1024*q}")
    a("v_and_b32 v23, 3, v1"); a("v_lshlrev_b32 v24, 12, v23")
    a("v_lshrrev_b32 v25, 2, v1"); a("v_lshl_add_u32 v25, v25, 6, v24")
    a(f"s_lshl_b32 s66, {sH}, 14"); a(f"s_add_u32 s66, s66, {W_O}")
    a("v_lshrrev_b32 v26, 4, v1"); a("v_lshlrev_b32 v26, 4, v26"); a("v_lshl_add_u32 v26, v23, 11, v26")
    a(f"s_lshl_b32 s67, {sS}, 2"); a(f"s_add_u32 s67, s67, {sW}"); a("s_lshl_b32 s67, s67, 13")
    a(f"s_lshl_b32 s68, {sH}, 6"); a("s_add_u32 s67, s67, s68"); a(f"s_add_u32 s67, s67, {W_Z}")
    a.label("L_poll1")
    a(f"buffer_load_dwordx4 v[96:99], v24, {SWS}, s66 offen offset:1024 sc1")
    a(f"buffer_load_dwordx4 v[100:103], v24, {SWS}, s66 offen offset:3072 sc1")
    for p in range(2):
        for k in range(4):
            r = 64 + 16*p + 4*k
            a(f"buffer_load_dwordx4 v[{r}:{r+3}], v25, {SWS}, s66 offen offset:{2048*p+16*k} sc1")
    a("s_waitcnt vmcnt(0)")
    tagcheck([f"v{r}" for r in range(65, 104, 2)], sTag, "v27", "v28")
    retry("L_poll1", "L_got1")
    stamp(7)
    a("v_max_f32 v27, v96, v100")
    a(f"v_max_f32_dpp v27, v27, v27 quad_perm:[1,0,3,2] {FULL}")
    a(f"v_max_f32_dpp v27, v27, v27 quad_perm:[2,3,0,1] {FULL}")
    a("v_sub_f32 v96, v96, v27"); a("v_sub_f32 v100, v100, v27")
    a("v_exp_f32 v96, v96"); a("v_exp_f32 v100, v100")
    a("v_mul_f32 v28, v96, v98"); a("v_fmac_f32 v28, v100, v102")
    for k in range(8): a(f"v_mul_f32 v{64+2*k}, v96, v{64+2*k}")
    a(f"v_add_f32_dpp v28, v28, v28 quad_perm:[1,0,3,2] {FULL}")
    for k in range(8): a(f"v_fmac_f32 v{64+2*k}, v100, v{80+2*k}")
    a(f"v_add_f32_dpp v28, v28, v28 quad_perm:[2,3,0,1] {FULL}")
    for k in range(8): a(f"v_add_f32_dpp v{64+2*k}, v{64+2*k}, v{64+2*k} quad_perm:[1,0,3,2] {FULL}")
    a("v_rcp_f32 v28, v28")
    for k in range(8): a(f"v_add_f32_dpp v{64+2*k}, v{64+2*k}, v{64+2*k} quad_perm:[2,3,0,1] {FULL}")
    for k in range(8): a(f"v_mul_f32 v{64+2*k}, v28, v{64+2*k}")
    for kp in range(4): a(f"v_cvt_pk_bf16_f32 v{96+kp}, v{64+4*kp}, v{66+4*kp}")
    a("s_waitcnt lgkmcnt(0)")
    Z = ["v10","v12","v14","v15","v16","v17","v18","v19"]
    for kp in range(4):
        for e in range(8):
            a(f"v_dot2_f32_bf16 {Z[e]}, v{32+8*kp+e}, v{96+kp}, {'0' if kp==0 else Z[e]}")
    a(f"v_mov_b32 v11, {sTag}"); a(f"v_mov_b32 v13, {sTag}")
    rowreduce8(Z)
    for r in (8,4):
        a(f"v_add_f32_dpp v10, v10, v10 row_ror:{r} {FULL}")
        a(f"v_add_f32_dpp v12, v12, v12 row_ror:{r} {FULL}")
    a("s_mov_b32 exec_lo, 0x000f000f"); a("s_mov_b32 exec_hi, 0x000f000f")
    a(f"buffer_store_dwordx4 v[10:13], v26, {SWS}, s67 offen sc1")
    a("s_mov_b64 exec, -1")
    a("s_branch L_fin")

    a.label("L_helper")
    a("v_lshlrev_b32 v23, 3, v1")
    for w in range(5): a(f"ds_read_b64 v[{10+2*w}:{11+2*w}], v23 offset:{L_PART+512*w}")
    a(f"s_lshl_b32 s66, s2, 10"); a(f"s_add_u32 s66, s66, {W_Q}")
    a(f"s_lshl_b32 s67, {sH}, 13"); a(f"s_add_u32 s67, s67, {W_Q}")
    a(f"v_mov_b32 v25, {sTag}"); a(f"v_mov_b32 v27, {sTag}")
    a("s_waitcnt lgkmcnt(0)")
    a("v_add_f32 v24, v10, v12"); a("v_add_f32 v26, v11, v13")
    a("v_add_f32 v14, v14, v16"); a("v_add_f32 v15, v15, v17")
    a("v_add_f32 v24, v24, v18"); a("v_add_f32 v26, v26, v19")
    a("v_add_f32 v24, v24, v14"); a("v_add_f32 v26, v26, v15")
    a(f"buffer_store_dwordx4 v[24:27], v2, {SWS}, s66 offen sc1")
    stamp(2)
    a.label("L_pollq")
    for p in range(8):
        a(f"buffer_load_dwordx4 v[{32+4*p}:{35+4*p}], {voff[p//4]}, {SWS}, s67 offen offset:{(p%4)*1024} sc1")
    a("s_waitcnt vmcnt(0)")
    tagcheck([f"v{r}" for r in range(33, 64, 2)], sTag, "v28", "v29")
    retry("L_pollq", "L_gotq")
    for st in (16, 8, 4):
        for r in range(32, 32+st, 2):
            a(f"v_add_f32 v{r}, v{r}, v{r+st}")
    a("v_cvt_pk_bf16_f32 v10, v32, v34")
    a("v_lshlrev_b32 v22, 2, v1")
    a(f"ds_write_b32 v22, v10 offset:{L_Q}")
    a("s_waitcnt lgkmcnt(0)")
    stamp(3)
    a("s_barrier")
    a(f"s_cmp_ge_u32 {sS}, 5")
    a("s_cbranch_scc1 L_fin")
    srd(40, 12, 4096*640*2)
    a("v_lshrrev_b32 v22, 2, v1"); a("v_mul_u32_u24 v22, 10240, v22")
    a("v_and_b32 v23, 3, v1"); a("v_lshl_add_u32 v22, v23, 4, v22")
    a(f"s_mul_i32 s66, {sH}, {128*1280}"); a(f"s_lshl_b32 s67, {sS}, 8"); a("s_add_u32 s66, s66, s67")
    for k in range(8):
        for w in range(4):
            r = 32 + 32*w + 4*k
            a(f"buffer_load_dwordx4 v[{r}:{r+3}], v22, {SWT}, s66 offen offset:{64*w}")
        if k < 7: a("s_add_u32 s66, s66, 1280")
    a("s_mov_b32 s66, 0x05040100"); a("s_mov_b32 s67, 0x07060302")
    a("s_waitcnt vmcnt(0)")
    for w in range(4):
        for kp in range(4):
            ra = 32 + 32*w + 8*kp; rb = ra + 4
            o = 8 + 8*(kp&1)
            for u in range(4):
                a(f"v_perm_b32 v{o+2*u}, v{rb+u}, v{ra+u}, s66")
                a(f"v_perm_b32 v{o+2*u+1}, v{rb+u}, v{ra+u}, s67")
            a(f"ds_write_b128 v2, v[{o}:{o+3}] offset:{L_WO+8192*w+2048*kp}")
            a(f"ds_write_b128 v2, v[{o+4}:{o+7}] offset:{L_WO+8192*w+2048*kp+1024}")
            if kp & 1: a("s_waitcnt lgkmcnt(0)")
    a("s_branch L_fin")

    a.label("L_ffn")
    sF = sH
    a(f"s_sub_u32 {sF}, s2, {NATT}")
    a("v_lshl_add_u32 v8, v7, 2, v6"); a("v_lshlrev_b32 v8, 1, v8")
    a(f"s_lshl_b32 s65, {sW}, 8")
    a("v_cmp_gt_u32 vcc, 8, v7")
    a("v_and_b32 v9, 7, v7"); a("v_lshlrev_b32 v9, 4, v9")
    a("v_mul_u32_u24 v23, 3456, v6"); a("v_add_u32 v9, v9, v23")
    a(f"s_mul_i32 s64, {sW}, {128*3456}"); a(f"s_lshl_b32 s66, {sF}, 7"); a("s_add_u32 s64, s64, s66")
    a("v_add_u32 v9, s64, v9")
    a("s_waitcnt lgkmcnt(0)")
    a(f"s_load_dword {sTag}, s[26:27], {W_EPOCH}")
    srd(36, 4, 1280)
    for k in range(5): a(f"buffer_load_dword v{160+k}, v22, {SX}, 0 offen offset:{256*k}")
    a(f"buffer_load_ushort v165, v8, {SX}, s65 offen")
    a(f"buffer_load_ushort v166, v8, {SX}, s65 offen offset:128")
    a("v_mov_b32 v24, s18"); a("v_mov_b32 v25, s19"); a("v_mov_b32 v26, s16"); a("v_mov_b32 v27, s17")
    a("v_cndmask_b32 v24, v24, v26, vcc"); a("v_cndmask_b32 v25, v25, v27, vcc")
    a("v_add_co_u32 v24, vcc, v24, v9"); a("v_addc_co_u32 v25, vcc, 0, v25, vcc")
    a(f"s_mov_b32 s66, {4*3456}"); a("s_mov_b32 s67, 0")
    for k in range(32):
        r = 32 + 4*k
        a(f"global_load_dwordx4 v[{r}:{r+3}], v[24:25], off nt")
        if k < 31: a("v_lshl_add_u64 v[24:25], v[24:25], 0, s[66:67]")
    srd(40, 20, 1728*640*2); srd(44, 26, W_SIZE); srd(48, 22, 1280)
    a("s_waitcnt vmcnt(34)")
    ln_stats(160, 10)
    a("s_waitcnt vmcnt(32)")
    ln_apply("v165", 10, "v22", "v23", "v26")
    ln_apply("v166", 10, "v24", "v25", "v26")
    for e in range(8): a(f"v_mov_b32 {ACC[e]}, 0")
    for k in range(32):
        a(f"s_waitcnt vmcnt({31-k})")
        gemv_load(ACC, "v22" if k < 16 else "v24", "v23" if k < 16 else "v25", 32+4*k, k & 15)
    a("v_mul_u32_u24 v26, 1280, v6"); a("v_lshl_add_u32 v26, v7, 4, v26")
    a(f"s_mul_i32 s64, {sF}, {64*1280}"); a(f"s_lshl_b32 s66, {sW}, 8"); a("s_add_u32 s64, s64, s66")
    for k in range(16):
        r = 32 + 4*k
        a(f"buffer_load_dwordx4 v[{r}:{r+3}], v26, {SWT}, s64 offen nt")
        if k < 15: a("s_add_u32 s64, s64, 5120")
    rowreduce8(ACC)
    a("v_lshlrev_b32 v27, 5, v7"); a("v_lshl_add_u32 v27, v6, 3, v27")
    a(f"s_lshl_b32 s66, {sW}, 9"); a("v_add_u32 v28, s66, v27")
    a(f"ds_write_b64 v28, v[10:11] offset:{L_PART}")
    a("v_lshlrev_b32 v29, 1, v8")
    a("s_waitcnt lgkmcnt(0)")
    a("s_barrier")
    a(f"s_add_u32 {sTag}, {sTag}, 1")
    for w in range(5):
        a(f"ds_read_b32 v{10+w}, v29 offset:{L_PART+512*w}")
        a(f"ds_read_b32 v{15+w}, v29 offset:{L_PART+512*w+256}")
    a("s_waitcnt lgkmcnt(0)")
    for b in (10, 15):
        a(f"v_add_f32 v{b}, v{b}, v{b+1}"); a(f"v_add_f32 v{b+2}, v{b+2}, v{b+3}")
        a(f"v_add_f32 v{b}, v{b}, v{b+4}"); a(f"v_add_f32 v{b}, v{b}, v{b+2}")
        a(f"v_cvt_pk_bf16_f32 v{b}, 0, v{b}")
    a("v_mul_f32 v11, v10, v10"); a("v_mul_f32 v11, v11, v10")
    a(f"v_mov_b32 v12, {f32(0.044715)}"); a("v_fma_f32 v11, v11, v12, v10")
    a(f"v_mul_f32 v11, {f32(-2.0*0.7978845608028654*LOG2E)}, v11")
    a("v_exp_f32 v11, v11"); a("v_add_f32 v11, 1.0, v11"); a("v_rcp_f32 v11, v11")
    a("v_mul_f32 v10, v10, v11"); a("v_cvt_pk_bf16_f32 v10, 0, v10")
    a("v_mul_f32 v10, v10, v15")
    a("v_cvt_pk_bf16_f32 v23, 0, v10"); a("v_cvt_pk_bf16_f32 v22, v10, 0")
    Y = ["v10","v12","v14","v15","v16","v17","v18","v19"]
    for e in range(8): a(f"v_mov_b32 {Y[e]}, 0")
    for k in range(16):
        a(f"s_waitcnt vmcnt({15-k})")
        gemv_load(Y, "v22", "v23", 32+4*k, k)
    a(f"v_mov_b32 v11, {sTag}"); a(f"v_mov_b32 v13, {sTag}")
    rowreduce8(Y)
    a("v_lshlrev_b32 v26, 11, v7"); a("v_lshl_add_u32 v26, v6, 4, v26")
    a(f"s_lshl_b32 s64, {sW}, 15"); a(f"s_lshl_b32 s66, {sF}, 6"); a("s_add_u32 s64, s64, s66"); a(f"s_add_u32 s64, s64, {W_Y}")
    a(f"buffer_store_dwordx4 v[10:13], v26, {SWS}, s64 offen sc1")
    stamp(2)
    sOct = sS
    a(f"s_mul_i32 {sOct}, {sF}, 5"); a(f"s_add_u32 {sOct}, {sOct}, {sW}")
    a(f"s_cmp_ge_u32 {sOct}, 80")
    a("s_cbranch_scc1 L_fin")
    a("v_and_b32 v27, 1, v1"); a("v_lshl_add_u32 v27, v27, 2, v6"); a("v_lshlrev_b32 v27, 1, v27")
    a(f"s_lshl_b32 s65, {sOct}, 4")
    a(f"buffer_load_ushort v28, v27, {SX}, s65 offen")
    a("v_lshlrev_b32 v20, 5, v1")
    a(f"v_mov_b32 v21, {sTag}")
    a("v_cmp_gt_u32 vcc, 54, v1")
    a("v_mov_b32 v29, 0x7f000000")
    a("v_cndmask_b32 v22, v29, v20, vcc"); a("v_cndmask_b32 v23, 0, v21, vcc")
    a(f"s_lshl_b32 s64, {sOct}, 11"); a(f"s_add_u32 s64, s64, {W_Y}")
    a(f"s_mov_b32 {sCnt}, 0")
    a("v_mov_b32 v31, 0")
    a.label("L_poll2")
    a(f"buffer_load_dwordx4 v[32:35], v22, {SWS}, s64 offen sc1")
    a(f"buffer_load_dwordx4 v[36:39], v22, {SWS}, s64 offen offset:16 sc1")
    a("s_waitcnt vmcnt(0)")
    tagcheck(["v33","v35","v37","v39"], "v23", "v24", "v25")
    retry("L_poll2", "L_got2")
    a("v_permlane32_swap_b32 v32, v36"); a("v_permlane32_swap_b32 v34, v38")
    a("v_add_f32 v32, v32, v36"); a("v_add_f32 v34, v34, v38")
    a("v_permlane16_swap_b32 v32, v34")
    a("v_add_f32 v32, v32, v34")
    a(f"v_add_f32_dpp v32, v32, v32 quad_perm:[2,3,0,1] {FULL}")
    a(f"v_add_f32_dpp v32, v32, v32 row_ror:8 {FULL}")
    a(f"v_add_f32_dpp v32, v32, v32 row_ror:4 {FULL}")
    a("v_cvt_pk_bf16_f32 v32, 0, v32")
    a(f"s_cmp_eq_u32 {sCnt}, 1")
    a("s_cbranch_scc1 L_final")
    a(f"v_mul_f32 v33, {f32(-LOG2E)}, v32")
    a("v_exp_f32 v33, v33"); a("v_add_f32 v33, 1.0, v33"); a("v_rcp_f32 v33, v33")
    a("v_mul_f32 v30, v32, v33"); a("v_cvt_pk_bf16_f32 v30, 0, v30")
    a("v_lshlrev_b32 v28, 16, v28")
    a("v_mov_b32 v22, v20"); a("v_mov_b32 v23, v21")
    a(f"s_lshl_b32 s64, {sOct}, 11"); a(f"s_add_u32 s64, s64, {W_Z}")
    a(f"s_mov_b32 {sCnt}, 1")
    stamp(3)
    a(f"s_and_b32 s66, {sOct}, 31"); a("s_lshl_b32 s66, s66, 14"); a(f"s_add_u32 s66, s66, {W_O + 7*2048 + 1024 + 4}")
    a.label("L_slow")
    a("s_sleep 12")
    a(f"buffer_load_dword v24, v31, {SWS}, s66 offen sc1")
    a("s_waitcnt vmcnt(0)")
    a("v_cmp_ne_u32 vcc, v24, v21")
    retry("L_slow", "L_slowdone")
    stamp(4)
    a("s_branch L_poll2")
    a.label("L_final")
    stamp(5)
    a("v_mul_f32 v32, v32, v30"); a("v_cvt_pk_bf16_f32 v32, 0, v32")
    a("v_add_f32 v32, v28, v32"); a("v_cvt_pk_bf16_f32 v32, v32, 0")
    a("s_mov_b32 exec_lo, 0x00030003"); a("s_mov_b32 exec_hi, 0x00030003")
    a(f"buffer_store_short v32, v27, {SOUT}, s65 offen")
    a(f"s_cmp_lg_u32 {sOct}, 0")
    a("s_cbranch_scc1 L_fin")
    a("s_mov_b64 exec, 1")
    a(f"buffer_store_dword v21, v31, {SWS}, 0 offen offset:{W_EPOCH} sc1")
    a.label("L_fin")
    if diag:
        a("s_mov_b64 exec, -1")
        a("s_waitcnt vmcnt(0)")
        stamp(1)
        a("s_add_u32 s44, s26, 0x20000000"); a("s_addc_u32 s45, s27, 0"); a("s_mov_b32 s46, 0x100000"); a("s_mov_b32 s47, 0x20000")
        a("s_mul_i32 s66, s2, 5"); a(f"s_add_u32 s66, s66, {sW}"); a("s_lshl_b32 s66, s66, 6")
        a("s_waitcnt lgkmcnt(0)")
        for k in range(16): a(f"v_mov_b32 v{32+k}, s{70+k}")
        a("v_mov_b32 v31, 0")
        a("s_mov_b64 exec, 1")
        for k in range(4): a(f"buffer_store_dwordx4 v[{32+4*k}:{35+4*k}], v31, s[44:47], s66 offen offset:{16*k}")
    a.label("L_end")
    a("s_endpgm")
    a.raw('.section .rodata,"a"'); a.raw(".p2align 6"); a.raw(f".amdhsa_kernel {KN}")
    a.raw("  .amdhsa_next_free_vgpr 168"); a.raw(f"  .amdhsa_next_free_sgpr {88 if diag else 72}"); a.raw("  .amdhsa_accum_offset 168")
    a.raw("  .amdhsa_group_segment_fixed_size 0"); a.raw("  .amdhsa_kernarg_size 96"); a.raw("  .amdhsa_user_sgpr_count 2")
    a.raw("  .amdhsa_user_sgpr_kernarg_segment_ptr 1"); a.raw("  .amdhsa_system_sgpr_workgroup_id_x 1")
    a.raw("  .amdhsa_float_denorm_mode_32 3")
    a.raw(".end_amdhsa_kernel")
    return a

if __name__ == "__main__":
    from build import build
    a = gen()
    open("k1.s","w").write(a.text()); print(build("k1.s"), a.nins, a.nnop)
    a = gen(diag=True)
    open("k1d.s","w").write(a.text()); print(build("k1d.s"), a.nins, a.nnop)
```

```python
import sys, json, struct
from asmlib import Asm
KN = "recurrent_scan__gqa_block_cached__geglu_ffn__decode_kernel"

def f32(x): return "0x%08x" % struct.unpack("<I", struct.pack("<f", x))[0]

HEADER = open("recurrent_scan__gqa_block_cached__geglu_ffn__decode.s.ref").read().split("; Override launch")[0]

NATT, NFFN = 256, 27
NWG = NATT + NFFN
L_PART, L_Q, L_ML, L_WO = 0, 2560, 2816, 3072
LDS_BYTES = L_WO + 32768
W_EPOCH, W_Q, W_O, W_Z, W_Y, W_SIZE = 4, 0x1000, 0x80000, 0x100000, 0x140000, 0x180000
LOG2E = 1.4426950408889634
SPIN = 200000

def bitrev4(j): return ((j&1)<<3)|((j&2)<<1)|((j&4)>>1)|((j&8)>>3)

def gen(D=5, diag=False, DF=1, DW=2, noffn=False, nowo=False, nocomp=False, notail=False, wopol="nt", kpol="nt", vpol="nt", wpol="nt", leak=None, burst=None):
    a = Asm()
    a.raw(HEADER.rstrip())
    a.raw(f"; @launch grid=({NWG},1,1) block=(320,1,1) lds={LDS_BYTES}")
    a.raw('.amdgcn_target "amdgcn-amd-amdhsa--gfx950"')
    a.raw(".text"); a.raw(f".globl {KN}"); a.raw(".p2align 8"); a.raw(f".type {KN},@function"); a.raw(f"{KN}:")
    FULL = "row_mask:0xf bank_mask:0xf"
    sW = "s3"
    SK, SV, SX, SWT, SWS, SOUT = "s[28:31]", "s[32:35]", "s[36:39]", "s[40:43]", "s[44:47]", "s[48:51]"
    sH, sS, sT, sTag, sCnt = "s52", "s53", "s54", "s55", "s56"
    sMC, sMA = "s[58:59]", "s[60:61]"
    sL2E, sScale = "s62", "s63"
    sSpin = "s57"
    def stamp(k):
        if diag:
            a(f"s_memrealtime s[{70+2*k}:{71+2*k}]")
    def srd(base, lo, size):
        a(f"s_mov_b32 s{base}, s{lo}"); a(f"s_mov_b32 s{base+1}, s{lo+1}")
        a(f"s_mov_b32 s{base+2}, {size}"); a(f"s_mov_b32 s{base+3}, 0x20000")
    def allreduce(op, v, t):
        for r in (8,4,2,1):
            a(f"{op}_dpp {v}, {v}, {v} row_ror:{r} {FULL}")
        a(f"v_mov_b32 {t}, {v}"); a(f"v_permlane16_swap_b32 {v}, {t}"); a(f"{op} {v}, {v}, {t}")
        a(f"v_mov_b32 {t}, {v}"); a(f"v_permlane32_swap_b32 {v}, {t}"); a(f"{op} {v}, {v}, {t}")
    def rowreduce8(acc):
        for e in range(4): a(f"v_permlane32_swap_b32 {acc[e]}, {acc[e+4]}")
        for e in range(4): a(f"v_add_f32 {acc[e]}, {acc[e]}, {acc[e+4]}")
        for e in range(2): a(f"v_permlane16_swap_b32 {acc[e]}, {acc[e+2]}")
        for e in range(2): a(f"v_add_f32 {acc[e]}, {acc[e]}, {acc[e+2]}")
    def ln_stats(x0, t0):
        S, Tm = f"v{t0}", f"v{t0+1}"
        u = [f"v{t0+2+k}" for k in range(10)]
        for k in range(5):
            a(f"v_lshlrev_b32 {u[2*k]}, 16, v{x0+k}")
            a(f"v_and_b32 {u[2*k+1]}, 0xffff0000, v{x0+k}")
        a(f"v_add_f32 {S}, {u[0]}, {u[1]}"); a(f"v_add_f32 {Tm}, {u[2]}, {u[3]}")
        for k in range(4, 10, 2):
            a(f"v_add_f32 {S}, {S}, {u[k]}"); a(f"v_add_f32 {Tm}, {Tm}, {u[k+1]}")
        a(f"v_add_f32 {S}, {S}, {Tm}")
        allreduce("v_add_f32", S, Tm)
        a(f"v_mul_f32 {S}, {f32(1.0/640)}, {S}")
        for k in range(10): a(f"v_sub_f32 {u[k]}, {u[k]}, {S}")
        a(f"v_mul_f32 {Tm}, {u[0]}, {u[0]}"); a(f"v_mul_f32 {u[1]}, {u[1]}, {u[1]}")
        for k in range(2, 10, 2):
            a(f"v_fmac_f32 {Tm}, {u[k]}, {u[k]}"); a(f"v_fmac_f32 {u[1]}, {u[k+1]}, {u[k+1]}")
        a(f"v_add_f32 {Tm}, {Tm}, {u[1]}")
        allreduce("v_add_f32", Tm, u[0])
        a(f"v_mul_f32 {Tm}, {f32(1.0/640)}, {Tm}")
        a(f"v_cvt_pk_bf16_f32 {S}, 0, {S}")
        a(f"v_cvt_pk_bf16_f32 {Tm}, 0, {Tm}")
        a(f"v_add_f32 {Tm}, {f32(1e-5)}, {Tm}")
        a(f"v_cvt_pk_bf16_f32 {Tm}, 0, {Tm}")
        a(f"v_sqrt_f32 {Tm}, {Tm}")
        a(f"v_cvt_pk_bf16_f32 {Tm}, 0, {Tm}")
        a(f"v_rcp_f32 {u[0]}, {Tm}")
    def ln_apply(xr, t0, lo, hi, tmp):
        a(f"v_lshlrev_b32 {xr}, 16, {xr}")
        a(f"v_sub_f32 {xr}, {xr}, v{t0}")
        a(f"v_cvt_pk_bf16_f32 {xr}, 0, {xr}")
        a(f"v_mul_f32 {tmp}, {xr}, v{t0+2}")
        a(f"v_fma_f32 {xr}, -{tmp}, v{t0+1}, {xr}")
        a(f"v_fmac_f32 {tmp}, {xr}, v{t0+2}")
        a(f"v_cvt_pk_bf16_f32 {hi}, 0, {tmp}")
        a(f"v_cvt_pk_bf16_f32 {lo}, {tmp}, 0")
    def gemv_load(acc, lo, hi, r, lane):
        for e in range(4):
            a(f"v_dot2c_f32_bf16_dpp {acc[2*e]}, {lo}, v{r+e} row_newbcast:{lane} {FULL}")
            a(f"v_dot2c_f32_bf16_dpp {acc[2*e+1]}, {hi}, v{r+e} row_newbcast:{lane} {FULL}")
    def tagcheck(tags, T, mn, mx):
        a(f"v_min3_u32 {mn}, {tags[0]}, {tags[1]}, {T}"); a(f"v_max3_u32 {mx}, {tags[0]}, {tags[1]}, {T}")
        for k in range(2, len(tags), 2):
            a(f"v_min3_u32 {mn}, {tags[k]}, {tags[k+1]}, {mn}"); a(f"v_max3_u32 {mx}, {tags[k]}, {tags[k+1]}, {mx}")
        a(f"v_cmp_ne_u32 vcc, {mn}, {mx}")
    def retry(label, done):
        a(f"s_cbranch_vccz {done}")
        a("s_mov_b64 exec, vcc")
        a(f"s_sub_u32 {sSpin}, {sSpin}, 1")
        a(f"s_cmp_gt_i32 {sSpin}, 0")
        a(f"s_cbranch_scc1 {label}")
        a.label(done)
        a("s_mov_b64 exec, -1")

    ACC = [f"v{10+e}" for e in range(8)]
    vM, vL, vPlo, vPhi = "v18", "v19", "v20", "v21"
    KR, VR = 32, 96
    voff = ["v2","v3","v4","v5"]
    def issue(i, sbase):
        t, j = i//16, i%16
        r = (KR if t == 0 else VR) + 4*j
        a(f"buffer_load_dwordx4 v[{r}:{r+3}], {voff[j//4]}, {SK if t==0 else SV}, {sbase} offen offset:{(j%4)*1024} {kpol if t==0 else vpol}")

    stamp(0)
    a("s_load_dwordx16 s[4:19], s[0:1], 0")
    a("s_load_dwordx8 s[20:27], s[0:1], 64")
    a(f"s_cmp_ge_u32 s2, {NWG}")
    a("s_cbranch_scc1 L_end")
    a("v_and_b32 v1, 63, v0")
    a("v_lshrrev_b32 v22, 6, v0")
    a("v_lshlrev_b32 v2, 4, v1")
    a(f"v_readfirstlane_b32 {sW}, v22")
    a("v_lshlrev_b32 v22, 2, v1")
    a("v_lshrrev_b32 v6, 4, v1")
    a("v_and_b32 v7, 15, v1")
    a(f"s_mov_b32 {sSpin}, {SPIN}")
    a(f"s_mov_b32 {sL2E}, {f32(LOG2E)}")
    a(f"s_cmp_ge_u32 s2, {NATT}")
    a("s_cbranch_scc1 L_ffn")
    a("v_add_u32 v3, 4096, v2"); a("v_add_u32 v4, 32768, v2"); a("v_add_u32 v5, 36864, v2")
    a(f"s_lshr_b32 {sH}, s2, 3"); a(f"s_and_b32 {sS}, s2, 7")
    a(f"s_cmp_eq_u32 {sW}, 4")
    a("s_cbranch_scc1 L_helper")
    a(f"s_lshl_b32 {sT}, s2, 20"); a(f"s_lshl_b32 s66, {sW}, 13"); a(f"s_add_u32 {sT}, {sT}, s66")
    a("s_waitcnt lgkmcnt(0)")
    srd(28, 6, "0x10000000")
    for i in range(D): issue(i, sT)
    a(f"s_load_dword {sTag}, s[26:27], {W_EPOCH}")
    srd(32, 8, "0x10000000"); srd(44, 26, W_SIZE)
    a("s_mov_b32 s58, 0xcccccccc"); a("s_mov_b32 s59, 0xcccccccc")
    a("s_mov_b32 s60, 0xaaaaaaaa"); a("s_mov_b32 s61, 0xaaaaaaaa")
    a(f"s_mov_b32 {sScale}, {f32(128**-0.5)}")
    a("v_lshlrev_b32 v166, 5, v7"); a("v_lshl_add_u32 v166, v6, 3, v166")
    a(f"s_lshl_b32 s66, {sW}, 9"); a("v_add_u32 v166, s66, v166")
    a("v_lshlrev_b32 v167, 4, v7")
    for e in range(8): a(f"v_mov_b32 {ACC[e]}, 0")
    a(f"v_mov_b32 {vM}, {f32(-3.0e38)}"); a(f"v_mov_b32 {vL}, 0")
    a(f"s_mov_b32 {sCnt}, 0")
    for i in range(D, 32):
        a(f"s_waitcnt vmcnt({D-1})")
        if i == D: stamp(2)
        issue(i, sT)
    stamp(3)
    a("s_barrier")
    a(f"ds_read_b128 v[6:9], v167 offset:{L_Q}")
    stamp(4)
    a("s_waitcnt lgkmcnt(0)")
    a(f"s_add_u32 {sTag}, {sTag}, 1")
    a.label("L_loop")
    a(f"s_add_u32 {sT}, {sT}, 65536")
    a(f"s_cmp_eq_u32 {sCnt}, 15")
    a("s_cselect_b32 s30, 0, s30"); a("s_cselect_b32 s34, 0, s34")
    if burst is not None: a(f"s_cmp_ge_u32 {sCnt}, 14")
    nlab = [0]
    def pace(i):
        if burst is None:
            a(f"s_waitcnt vmcnt({D-1})")
        else:
            nlab[0] += 1
            a(f"s_cbranch_scc1 L_p{nlab[0]}")
            a(f"s_waitcnt vmcnt({D-1})")
            a.label(f"L_p{nlab[0]}")
            a(f"s_waitcnt vmcnt({burst})")
    A_ = ["v22","v23"]; B_ = ["v24","v25"]; C_ = ["v26","v27"]; D_ = ["v28","v29"]; T0, T1 = "v30", "v31"
    for j in range(16):
        r = KR + 4*j; t = A_[j&1]
        a(f"v_dot2_f32_bf16 {t}, v{r}, v6, 0")
        for e in range(1,4): a(f"v_dot2_f32_bf16 {t}, v{r+e}, v{6+e}, {t}")
        pace(j)
        issue(j, sT)
        if j & 1:
            b = B_[(j>>1)&1]
            a(f"v_add_f32_dpp {b}, {A_[0]}, {A_[0]} row_ror:8 row_mask:0xf bank_mask:0x3")
            a(f"v_add_f32_dpp {b}, {A_[1]}, {A_[1]} row_ror:8 row_mask:0xf bank_mask:0xc")
            if j & 2:
                c = C_[(j>>2)&1]
                a(f"v_add_f32_dpp {c}, {B_[0]}, {B_[0]} row_half_mirror row_mask:0xf bank_mask:0x5")
                a(f"v_add_f32_dpp {c}, {B_[1]}, {B_[1]} row_half_mirror row_mask:0xf bank_mask:0xa")
                if j & 4:
                    d = D_[(j>>3)&1]
                    a(f"v_add_f32_dpp {T0}, {C_[0]}, {C_[0]} quad_perm:[2,3,0,1] {FULL}")
                    a(f"v_add_f32_dpp {T1}, {C_[1]}, {C_[1]} quad_perm:[2,3,0,1] {FULL}")
                    a(f"v_cndmask_b32 {d}, {T0}, {T1}, {sMC}")
    a(f"v_add_f32_dpp {T0}, {D_[0]}, {D_[0]} quad_perm:[1,0,3,2] {FULL}")
    a(f"v_add_f32_dpp {T1}, {D_[1]}, {D_[1]} quad_perm:[1,0,3,2] {FULL}")
    S = "v22"; MX = "v23"; AL = "v24"
    a(f"v_cndmask_b32 {S}, {T0}, {T1}, {sMA}")
    a(f"v_cvt_pk_bf16_f32 {S}, 0, {S}")
    a(f"v_mul_f32 {S}, {sScale}, {S}")
    a(f"v_cvt_pk_bf16_f32 {S}, 0, {S}")
    a(f"v_max_f32 {MX}, {S}, {vM}")
    allreduce("v_max_f32", MX, T0)
    a(f"v_sub_f32 {S}, {S}, {MX}"); a(f"v_sub_f32 {AL}, {vM}, {MX}")
    a(f"v_mul_f32 {S}, {sL2E}, {S}"); a(f"v_mul_f32 {AL}, {sL2E}, {AL}")
    a(f"v_exp_f32 {S}, {S}"); a(f"v_exp_f32 {AL}, {AL}")
    a(f"v_mov_b32 {vM}, {MX}")
    a(f"v_cvt_pk_bf16_f32 {vPhi}, 0, {S}"); a(f"v_cvt_pk_bf16_f32 {vPlo}, {S}, 0")
    for e in range(8): a(f"v_mul_f32 {ACC[e]}, {ACC[e]}, {AL}")
    a(f"v_fma_f32 {vL}, {vL}, {AL}, {vPhi}")
    for j in range(16):
        if not nocomp: gemv_load(ACC, vPlo, vPhi, VR+4*j, bitrev4(j))
        pace(16+j)
        issue(16+j, sT)
    a(f"s_add_u32 {sCnt}, {sCnt}, 1")
    a(f"s_cmp_lt_u32 {sCnt}, 16")
    a("s_cbranch_scc1 L_loop")
    stamp(5)
    if notail: a("s_branch L_fin")
    rowreduce8(ACC)
    a(f"ds_write_b64 v166, v[10:11] offset:{L_PART}")
    allreduce("v_add_f32", vL, T0)
    a(f"v_mul_f32 {vM}, {sL2E}, {vM}")
    a(f"s_lshl_b32 s66, {sW}, 3"); a("v_mov_b32 v22, s66")
    a(f"ds_write_b64 v22, v[18:19] offset:{L_ML}")
    a("v_lshlrev_b32 v23, 3, v1")
    a("v_mov_b32 v24, 0")
    a(f"s_lshl_b32 s66, s2, 11"); a(f"s_add_u32 s66, s66, {W_O}")
    a("s_waitcnt vmcnt(0) lgkmcnt(0)")
    a("s_barrier")
    a(f"s_cmp_lg_u32 {sW}, 0")
    a("s_cbranch_scc1 L_hop1")
    a(f"ds_read_b128 v[104:107], v24 offset:{L_ML}"); a(f"ds_read_b128 v[108:111], v24 offset:{L_ML+16}")
    for w in range(4): a(f"ds_read_b64 v[{112+2*w}:{113+2*w}], v23 offset:{L_PART+512*w}")
    a(f"v_mov_b32 v121, {sTag}"); a(f"v_mov_b32 v123, {sTag}"); a(f"v_mov_b32 v125, {sTag}"); a(f"v_mov_b32 v127, {sTag}")
    a("s_waitcnt lgkmcnt(4)")
    a("v_max3_f32 v124, v104, v106, v108"); a("v_max_f32 v124, v124, v110")
    for w in range(4): a(f"v_sub_f32 v{104+2*w}, v{104+2*w}, v124")
    for w in range(4): a(f"v_exp_f32 v{104+2*w}, v{104+2*w}")
    a("s_waitcnt lgkmcnt(0)")
    a("v_mul_f32 v120, v104, v112"); a("v_mul_f32 v122, v104, v113"); a("v_mul_f32 v126, v104, v105")
    for w in range(1,4):
        a(f"v_fmac_f32 v120, v{104+2*w}, v{112+2*w}"); a(f"v_fmac_f32 v122, v{104+2*w}, v{113+2*w}")
        a(f"v_fmac_f32 v126, v{104+2*w}, v{105+2*w}")
    a(f"buffer_store_dwordx4 v[120:123], v2, {SWS}, s66 offen sc1")
    a("s_mov_b64 exec, 1")
    a(f"buffer_store_dwordx4 v[124:127], v2, {SWS}, s66 offen offset:1024 sc1")
    a("s_mov_b64 exec, -1")
    a.label("L_hop1")
    stamp(6)
    a(f"s_cmp_ge_u32 {sS}, 5")
    a("s_cbranch_scc1 L_red")
    a(f"s_lshl_b32 s66, {sW}, 13"); a("v_add_u32 v22, s66, v2")
    for q in range(8): a(f"ds_read_b128 v[{32+4*q}:{35+4*q}], v22 offset:{L_WO+1024*q}")
    a("v_and_b32 v23, 3, v1"); a("v_lshlrev_b32 v24, 12, v23")
    a("v_lshrrev_b32 v25, 2, v1"); a("v_lshl_add_u32 v25, v25, 6, v24")
    a(f"s_lshl_b32 s66, {sH}, 14"); a(f"s_add_u32 s66, s66, {W_O}")
    a("v_lshrrev_b32 v26, 4, v1"); a("v_lshlrev_b32 v26, 4, v26"); a("v_lshl_add_u32 v26, v23, 11, v26")
    a(f"s_lshl_b32 s67, {sS}, 2"); a(f"s_add_u32 s67, s67, {sW}"); a("s_lshl_b32 s67, s67, 13")
    a(f"s_lshl_b32 s68, {sH}, 6"); a("s_add_u32 s67, s67, s68"); a(f"s_add_u32 s67, s67, {W_Z}")
    a.label("L_poll1")
    a(f"buffer_load_dwordx4 v[96:99], v24, {SWS}, s66 offen offset:1024 sc1")
    a(f"buffer_load_dwordx4 v[100:103], v24, {SWS}, s66 offen offset:3072 sc1")
    for p in range(2):
        for k in range(4):
            r = 64 + 16*p + 4*k
            a(f"buffer_load_dwordx4 v[{r}:{r+3}], v25, {SWS}, s66 offen offset:{2048*p+16*k} sc1")
    a("s_waitcnt vmcnt(0)")
    tagcheck([f"v{r}" for r in range(65, 104, 2)], sTag, "v27", "v28")
    retry("L_poll1", "L_got1")
    stamp(7)
    a("v_max_f32 v27, v96, v100")
    a(f"v_max_f32_dpp v27, v27, v27 quad_perm:[1,0,3,2] {FULL}")
    a(f"v_max_f32_dpp v27, v27, v27 quad_perm:[2,3,0,1] {FULL}")
    a("v_sub_f32 v96, v96, v27"); a("v_sub_f32 v100, v100, v27")
    a("v_exp_f32 v96, v96"); a("v_exp_f32 v100, v100")
    a("v_mul_f32 v28, v96, v98"); a("v_fmac_f32 v28, v100, v102")
    for k in range(8): a(f"v_mul_f32 v{64+2*k}, v96, v{64+2*k}")
    a(f"v_add_f32_dpp v28, v28, v28 quad_perm:[1,0,3,2] {FULL}")
    for k in range(8): a(f"v_fmac_f32 v{64+2*k}, v100, v{80+2*k}")
    a(f"v_add_f32_dpp v28, v28, v28 quad_perm:[2,3,0,1] {FULL}")
    for k in range(8): a(f"v_add_f32_dpp v{64+2*k}, v{64+2*k}, v{64+2*k} quad_perm:[1,0,3,2] {FULL}")
    a("v_rcp_f32 v28, v28")
    for k in range(8): a(f"v_add_f32_dpp v{64+2*k}, v{64+2*k}, v{64+2*k} quad_perm:[2,3,0,1] {FULL}")
    for k in range(8): a(f"v_mul_f32 v{64+2*k}, v28, v{64+2*k}")
    for kp in range(4): a(f"v_cvt_pk_bf16_f32 v{96+kp}, v{64+4*kp}, v{66+4*kp}")
    a("s_waitcnt lgkmcnt(0)")
    Z = ["v10","v12","v14","v15","v16","v17","v18","v19"]
    for kp in range(4):
        for e in range(8):
            a(f"v_dot2_f32_bf16 {Z[e]}, v{32+8*kp+e}, v{96+kp}, {'0' if kp==0 else Z[e]}")
    a(f"v_mov_b32 v11, {sTag}"); a(f"v_mov_b32 v13, {sTag}")
    rowreduce8(Z)
    for r in (8,4):
        a(f"v_add_f32_dpp v10, v10, v10 row_ror:{r} {FULL}")
        a(f"v_add_f32_dpp v12, v12, v12 row_ror:{r} {FULL}")
    a("s_mov_b32 exec_lo, 0x000f000f"); a("s_mov_b32 exec_hi, 0x000f000f")
    a(f"buffer_store_dwordx4 v[10:13], v26, {SWS}, s67 offen sc1")
    a("s_mov_b64 exec, -1")
    a("s_branch L_fin")

    a.label("L_helper")
    a("v_lshl_add_u32 v8, v7, 2, v6"); a("v_lshlrev_b32 v8, 1, v8")
    a("v_lshlrev_b32 v9, 4, v7"); a("v_lshl_add_u32 v9, v6, 13, v9")
    a(f"s_mul_i32 s64, {sS}, 80")
    a("s_lshl_b32 s65, s64, 1")
    a("s_lshl_b32 s64, s64, 13"); a(f"s_lshl_b32 s66, {sH}, 8"); a("s_add_u32 s64, s64, s66")
    a("s_waitcnt lgkmcnt(0)")
    srd(36, 4, 1280); srd(40, 10, 640*4096*2)
    for k in range(5): a(f"buffer_load_dword v{160+k}, v22, {SX}, 0 offen offset:{256*k}")
    a(f"buffer_load_ushort v165, v8, {SX}, s65 offen")
    a(f"buffer_load_ushort v166, v8, {SX}, s65 offen offset:128")
    for k in range(20):
        r = 32 + 4*k
        a(f"buffer_load_dwordx4 v[{r}:{r+3}], v9, {SWT}, s64 offen {wpol}")
        if k < 19: a("s_add_u32 s64, s64, 32768")
    a(f"s_load_dword {sTag}, s[26:27], {W_EPOCH}")
    stamp(4)
    srd(44, 26, W_SIZE)
    QA = ["v24","v26","v10","v11","v12","v13","v14","v15"]
    for e in range(8): a(f"v_mov_b32 {QA[e]}, 0")
    a("v_lshlrev_b32 v23, 6, v7"); a("v_lshl_add_u32 v23, v6, 4, v23")
    a(f"s_lshl_b32 s66, s2, 10"); a(f"s_add_u32 s66, s66, {W_Q}")
    a(f"s_lshl_b32 s67, {sH}, 13"); a(f"s_add_u32 s67, s67, {W_Q}")
    a("s_waitcnt vmcnt(22)")
    stamp(5)
    ln_stats(160, 140)
    a("s_waitcnt vmcnt(20)")
    ln_apply("v165", 140, "v16", "v17", "v22")
    ln_apply("v166", 140, "v18", "v19", "v22")
    stamp(6)
    for k in range(20):
        a(f"s_waitcnt vmcnt({19-k})")
        gemv_load(QA, "v16" if k < 16 else "v18", "v17" if k < 16 else "v19", 32+4*k, k & 15)
    a("s_waitcnt lgkmcnt(0)")
    a(f"s_add_u32 {sTag}, {sTag}, 1")
    rowreduce8(QA)
    a(f"v_mov_b32 v25, {sTag}"); a(f"v_mov_b32 v27, {sTag}")
    a(f"buffer_store_dwordx4 v[24:27], v23, {SWS}, s66 offen sc1")
    stamp(2)
    a.label("L_pollq")
    for p in range(8):
        a(f"buffer_load_dwordx4 v[{32+4*p}:{35+4*p}], {voff[p//4]}, {SWS}, s67 offen offset:{(p%4)*1024} sc1")
    a("s_waitcnt vmcnt(0)")
    tagcheck([f"v{r}" for r in range(33, 64, 2)], sTag, "v28", "v29")
    retry("L_pollq", "L_gotq")
    for st in (16, 8, 4):
        for r in range(32, 32+st, 2):
            a(f"v_add_f32 v{r}, v{r}, v{r+st}")
    a("v_cvt_pk_bf16_f32 v10, v32, v34")
    a("v_lshlrev_b32 v22, 2, v1")
    a(f"ds_write_b32 v22, v10 offset:{L_Q}")
    a("s_waitcnt lgkmcnt(0)")
    stamp(3)
    a("s_barrier")
    a(f"s_cmp_ge_u32 {sS}, 5")
    a("s_cbranch_scc1 L_fin")
    if nowo: a("s_branch L_fin")
    srd(40, 12, 4096*640*2)
    a("v_mul_u32_u24 v22, 2560, v6"); a("v_lshl_add_u32 v22, v7, 4, v22")
    a(f"s_mul_i32 s66, {sH}, {128*1280}"); a(f"s_lshl_b32 s67, {sS}, 8"); a("s_add_u32 s66, s66, s67")
    for k in range(16):
        for u in range(2):
            r = 32 + 8*k + 4*u
            if 2*k+u >= DW: a(f"s_waitcnt vmcnt({DW-1})")
            a(f"buffer_load_dwordx4 v[{r}:{r+3}], v22, {SWT}, s66 offen offset:{1280*u} {wopol}")
        if k < 15: a("s_add_u32 s66, s66, 10240")
    a("s_mov_b32 s66, 0x05040100"); a("s_mov_b32 s67, 0x07060302")
    a("v_lshrrev_b32 v24, 2, v7"); a("v_lshlrev_b32 v24, 13, v24"); a("v_lshl_add_u32 v24, v6, 11, v24")
    a("v_and_b32 v25, 3, v7"); a("v_lshl_add_u32 v24, v25, 4, v24")
    a("s_waitcnt vmcnt(0)")
    for k in range(16):
        ra = 32 + 8*k; rb = ra + 4
        o = 8 + 8*(k&1)
        for u in range(4):
            a(f"v_perm_b32 v{o+2*u}, v{rb+u}, v{ra+u}, s66")
            a(f"v_perm_b32 v{o+2*u+1}, v{rb+u}, v{ra+u}, s67")
        a(f"ds_write_b128 v24, v[{o}:{o+3}] offset:{L_WO+64*k}")
        a(f"ds_write_b128 v24, v[{o+4}:{o+7}] offset:{L_WO+64*k+1024}")
        if k & 1: a("s_waitcnt lgkmcnt(0)")
    a("s_branch L_fin")

    a.label("L_ffn")
    if noffn:
        a("s_waitcnt lgkmcnt(0)"); a("s_branch L_fin")
    sF = sH
    a(f"s_sub_u32 {sF}, s2, {NATT}")
    a("v_lshl_add_u32 v8, v7, 2, v6"); a("v_lshlrev_b32 v8, 1, v8")
    a(f"s_lshl_b32 s65, {sW}, 8")
    a("v_cmp_gt_u32 vcc, 8, v7")
    a("v_and_b32 v9, 7, v7"); a("v_lshlrev_b32 v9, 4, v9")
    a("v_mul_u32_u24 v23, 3456, v6"); a("v_add_u32 v9, v9, v23")
    a(f"s_mul_i32 s64, {sW}, {128*3456}"); a(f"s_lshl_b32 s66, {sF}, 7"); a("s_add_u32 s64, s64, s66")
    a("v_add_u32 v9, s64, v9")
    a("s_waitcnt lgkmcnt(0)")
    a(f"s_load_dword {sTag}, s[26:27], {W_EPOCH}")
    srd(36, 4, 1280)
    for k in range(5): a(f"buffer_load_dword v{160+k}, v22, {SX}, 0 offen offset:{256*k}")
    a(f"buffer_load_ushort v165, v8, {SX}, s65 offen")
    a(f"buffer_load_ushort v166, v8, {SX}, s65 offen offset:128")
    a("v_mov_b32 v24, s18"); a("v_mov_b32 v25, s19"); a("v_mov_b32 v26, s16"); a("v_mov_b32 v27, s17")
    a("v_cndmask_b32 v24, v24, v26, vcc"); a("v_cndmask_b32 v25, v25, v27, vcc")
    a("v_add_co_u32 v24, vcc, v24, v9"); a("v_addc_co_u32 v25, vcc, 0, v25, vcc")
    a(f"s_mov_b32 s66, {4*3456}"); a("s_mov_b32 s67, 0")
    for k in range(32):
        r = 32 + 4*k
        if k >= DF: a(f"s_waitcnt vmcnt({DF-1})")
        a(f"global_load_dwordx4 v[{r}:{r+3}], v[24:25], off {wpol}")
        if k < 31: a("v_lshl_add_u64 v[24:25], v[24:25], 0, s[66:67]")
    srd(40, 20, 1728*640*2); srd(44, 26, W_SIZE)
    a("s_waitcnt vmcnt(34)")
    ln_stats(160, 10)
    a("s_waitcnt vmcnt(32)")
    ln_apply("v165", 10, "v22", "v23", "v26")
    ln_apply("v166", 10, "v24", "v25", "v26")
    for e in range(8): a(f"v_mov_b32 {ACC[e]}, 0")
    for k in range(32):
        a(f"s_waitcnt vmcnt({31-k})")
        gemv_load(ACC, "v22" if k < 16 else "v24", "v23" if k < 16 else "v25", 32+4*k, k & 15)
    a("v_mul_u32_u24 v26, 1280, v6"); a("v_lshl_add_u32 v26, v7, 4, v26")
    a(f"s_mul_i32 s64, {sF}, {64*1280}"); a(f"s_lshl_b32 s66, {sW}, 8"); a("s_add_u32 s64, s64, s66")
    for k in range(16):
        r = 32 + 4*k
        if k >= DF: a(f"s_waitcnt vmcnt({DF-1})")
        a(f"buffer_load_dwordx4 v[{r}:{r+3}], v26, {SWT}, s64 offen {wpol}")
        if k < 15: a("s_add_u32 s64, s64, 5120")
    rowreduce8(ACC)
    a("v_lshlrev_b32 v27, 5, v7"); a("v_lshl_add_u32 v27, v6, 3, v27")
    a(f"s_lshl_b32 s66, {sW}, 9"); a("v_add_u32 v28, s66, v27")
    a(f"ds_write_b64 v28, v[10:11] offset:{L_PART}")
    a("v_lshlrev_b32 v29, 1, v8")
    a("s_waitcnt lgkmcnt(0)")
    a("s_barrier")
    a(f"s_add_u32 {sTag}, {sTag}, 1")
    for w in range(5):
        a(f"ds_read_b32 v{10+w}, v29 offset:{L_PART+512*w}")
        a(f"ds_read_b32 v{15+w}, v29 offset:{L_PART+512*w+256}")
    a("s_waitcnt lgkmcnt(0)")
    for b in (10, 15):
        a(f"v_add_f32 v{b}, v{b}, v{b+1}"); a(f"v_add_f32 v{b+2}, v{b+2}, v{b+3}")
        a(f"v_add_f32 v{b}, v{b}, v{b+4}"); a(f"v_add_f32 v{b}, v{b}, v{b+2}")
        a(f"v_cvt_pk_bf16_f32 v{b}, 0, v{b}")
    a("v_mul_f32 v11, v10, v10"); a("v_mul_f32 v11, v11, v10")
    a(f"v_mov_b32 v12, {f32(0.044715)}"); a("v_fma_f32 v11, v11, v12, v10")
    a(f"v_mul_f32 v11, {f32(-2.0*0.7978845608028654*LOG2E)}, v11")
    a("v_exp_f32 v11, v11"); a("v_add_f32 v11, 1.0, v11"); a("v_rcp_f32 v11, v11")
    a("v_mul_f32 v10, v10, v11"); a("v_cvt_pk_bf16_f32 v10, 0, v10")
    a("v_mul_f32 v10, v10, v15")
    a("v_cvt_pk_bf16_f32 v23, 0, v10"); a("v_cvt_pk_bf16_f32 v22, v10, 0")
    Y = ["v10","v12","v14","v15","v16","v17","v18","v19"]
    for e in range(8): a(f"v_mov_b32 {Y[e]}, 0")
    for k in range(16):
        a(f"s_waitcnt vmcnt({15-k})")
        gemv_load(Y, "v22", "v23", 32+4*k, k)
    a(f"v_mov_b32 v11, {sTag}"); a(f"v_mov_b32 v13, {sTag}")
    rowreduce8(Y)
    a("v_lshlrev_b32 v26, 11, v7"); a("v_lshl_add_u32 v26, v6, 4, v26")
    a(f"s_lshl_b32 s64, {sW}, 15"); a(f"s_lshl_b32 s66, {sF}, 6"); a("s_add_u32 s64, s64, s66"); a(f"s_add_u32 s64, s64, {W_Y}")
    a(f"buffer_store_dwordx4 v[10:13], v26, {SWS}, s64 offen sc1")
    stamp(2)
    a("s_branch L_fin")
    a.label("L_red")
    if noffn: a("s_branch L_fin")
    sOct = sT
    a(f"s_cmp_lg_u32 {sS}, 7"); a("s_cbranch_scc1 L_fin")
    a(f"s_cmp_ge_u32 {sH}, 20"); a("s_cbranch_scc1 L_fin")
    a(f"s_lshl_b32 {sOct}, {sH}, 2"); a(f"s_add_u32 {sOct}, {sOct}, {sW}")
    srd(36, 4, 1280); srd(48, 22, 1280)
    a("v_lshrrev_b32 v6, 4, v1")
    a("v_and_b32 v27, 1, v1"); a("v_lshl_add_u32 v27, v27, 2, v6"); a("v_lshlrev_b32 v27, 1, v27")
    a(f"s_lshl_b32 s65, {sOct}, 4")
    a(f"buffer_load_ushort v28, v27, {SX}, s65 offen")
    a("v_lshlrev_b32 v20, 5, v1")
    a(f"v_mov_b32 v21, {sTag}")
    a("v_cmp_gt_u32 vcc, 54, v1")
    a("v_mov_b32 v29, 0x7f000000")
    a("v_cndmask_b32 v22, v29, v20, vcc"); a("v_cndmask_b32 v23, 0, v21, vcc")
    a(f"s_lshl_b32 s64, {sOct}, 11"); a(f"s_add_u32 s64, s64, {W_Y}")
    a(f"s_mov_b32 {sCnt}, 0")
    a("v_mov_b32 v31, 0")
    a.label("L_poll2")
    a(f"buffer_load_dwordx4 v[32:35], v22, {SWS}, s64 offen sc1")
    a(f"buffer_load_dwordx4 v[36:39], v22, {SWS}, s64 offen offset:16 sc1")
    a("s_waitcnt vmcnt(0)")
    tagcheck(["v33","v35","v37","v39"], "v23", "v24", "v25")
    retry("L_poll2", "L_got2")
    a("v_permlane32_swap_b32 v32, v36"); a("v_permlane32_swap_b32 v34, v38")
    a("v_add_f32 v32, v32, v36"); a("v_add_f32 v34, v34, v38")
    a("v_permlane16_swap_b32 v32, v34")
    a("v_add_f32 v32, v32, v34")
    a(f"v_add_f32_dpp v32, v32, v32 quad_perm:[2,3,0,1] {FULL}")
    a(f"v_add_f32_dpp v32, v32, v32 row_ror:8 {FULL}")
    a(f"v_add_f32_dpp v32, v32, v32 row_ror:4 {FULL}")
    a("v_cvt_pk_bf16_f32 v32, 0, v32")
    a(f"s_cmp_eq_u32 {sCnt}, 1")
    a("s_cbranch_scc1 L_final")
    a(f"v_mul_f32 v33, {f32(-LOG2E)}, v32")
    a("v_exp_f32 v33, v33"); a("v_add_f32 v33, 1.0, v33"); a("v_rcp_f32 v33, v33")
    a("v_mul_f32 v30, v32, v33"); a("v_cvt_pk_bf16_f32 v30, 0, v30")
    a("v_lshlrev_b32 v28, 16, v28")
    a("v_mov_b32 v22, v20"); a("v_mov_b32 v23, v21")
    a(f"s_lshl_b32 s64, {sOct}, 11"); a(f"s_add_u32 s64, s64, {W_Z}")
    a(f"s_mov_b32 {sCnt}, 1")
    a("s_branch L_poll2")
    a.label("L_final")
    stamp(7)
    a("v_mul_f32 v32, v32, v30"); a("v_cvt_pk_bf16_f32 v32, 0, v32")
    a("v_add_f32 v32, v28, v32"); a("v_cvt_pk_bf16_f32 v32, v32, 0")
    a("s_mov_b32 exec_lo, 0x00030003"); a("s_mov_b32 exec_hi, 0x00030003")
    a(f"buffer_store_short v32, v27, {SOUT}, s65 offen")
    a(f"s_cmp_lg_u32 {sOct}, 0")
    a("s_cbranch_scc1 L_fin")
    a("s_mov_b64 exec, 1")
    a(f"buffer_store_dword v21, v31, {SWS}, 0 offen offset:{W_EPOCH} sc1")
    a.label("L_fin")
    if leak is not None:
        a("s_cmp_lg_u32 s2, 7"); a("s_cbranch_scc1 L_end")
        a(f"s_cmp_lg_u32 {sW}, 0"); a("s_cbranch_scc1 L_end")
        a("s_waitcnt vmcnt(0) lgkmcnt(0)")
        a(f"s_sub_u32 s66, s{70+2*leak}, s70"); a("s_lshl_b32 s66, s66, 2"); a("s_add_u32 s66, s66, 20000")
        a.label("L_leak")
        a("s_memrealtime s[86:87]"); a("s_waitcnt lgkmcnt(0)")
        a("s_sub_u32 s67, s86, s70"); a("s_cmp_lt_u32 s67, s66"); a("s_cbranch_scc1 L_leak")
    elif diag:
        a("s_mov_b64 exec, -1")
        a("s_waitcnt vmcnt(0)")
        stamp(1)
        a("s_add_u32 s44, s26, 0x20000000"); a("s_addc_u32 s45, s27, 0"); a("s_mov_b32 s46, 0x100000"); a("s_mov_b32 s47, 0x20000")
        a("s_mul_i32 s66, s2, 5"); a(f"s_add_u32 s66, s66, {sW}"); a("s_lshl_b32 s66, s66, 6")
        a("s_waitcnt lgkmcnt(0)")
        for k in range(16): a(f"v_mov_b32 v{32+k}, s{70+k}")
        a("v_mov_b32 v31, 0")
        a("s_mov_b64 exec, 1")
        for k in range(4): a(f"buffer_store_dwordx4 v[{32+4*k}:{35+4*k}], v31, s[44:47], s66 offen offset:{16*k}")
    a.label("L_end")
    a("s_endpgm")
    a.raw('.section .rodata,"a"'); a.raw(".p2align 6"); a.raw(f".amdhsa_kernel {KN}")
    a.raw("  .amdhsa_next_free_vgpr 168"); a.raw(f"  .amdhsa_next_free_sgpr {88 if diag else 72}"); a.raw("  .amdhsa_accum_offset 168")
    a.raw("  .amdhsa_group_segment_fixed_size 0"); a.raw("  .amdhsa_kernarg_size 96"); a.raw("  .amdhsa_user_sgpr_count 2")
    a.raw("  .amdhsa_user_sgpr_kernarg_segment_ptr 1"); a.raw("  .amdhsa_system_sgpr_workgroup_id_x 1")
    a.raw("  .amdhsa_float_denorm_mode_32 3")
    a.raw(".end_amdhsa_kernel")
    return a

if __name__ == "__main__":
    from build import build
    import sys
    outs = []
    def mk(name, **kw):
        a = gen(**kw); open(name+".s","w").write(a.text()); build(name+".s"); outs.append(name+".co")
    mk("e2_noffn_nowo", D=5, diag=True, noffn=True, nowo=True)
    mk("e2_noffn_dw2", D=5, diag=True, noffn=True, DW=2)
    mk("e2_noffn_dw32", D=5, diag=True, noffn=True, DW=32)
    mk("e2_df1_dw2", D=5, diag=True, DF=1, DW=2)
    mk("e2_df2_dw4", D=5, diag=True, DF=2, DW=4)
    mk("e2_df4_dw32", D=5, diag=True, DF=4, DW=32)
    mk("e2_d6_df2_dw4", D=6, diag=True, DF=2, DW=4)
    open("list.txt","w").write(",".join(outs))
    print(json.dumps(["work/bench_host","work/tl.py","work/list.txt"]+["work/"+o for o in outs]))
```

```python
import sys, json
from gen import gen
from build import build
def mk(name, **kw):
    a = gen(**kw); open(name+".s","w").write(a.text()); build(name+".s"); return name
if __name__ == "__main__":
    outs=[]
    for spec in sys.argv[1:]:
        name, _, kv = spec.partition(":")
        kw = eval("dict(%s)" % kv)
        outs.append(mk(name, **kw))
    open("list.txt","w").write(",".join(o+".co" for o in outs))
    print(json.dumps(["work/"+o+".s" for o in outs]))
    print(json.dumps(["work/bench_host","work/tl.py","work/list.txt"]+["work/"+o+".co" for o in outs]))
```

```python
import sys, json, struct
from asmlib import Asm
KN = "recurrent_scan__gqa_block_cached__geglu_ffn__decode_kernel"

def f32(x): return "0x%08x" % struct.unpack("<I", struct.pack("<f", x))[0]

HEADER = open("recurrent_scan__gqa_block_cached__geglu_ffn__decode.s.ref").read().split("; Override launch")[0]

NATT, NFFN = 256, 27
NWG = NATT + NFFN
L_PART, L_Q, L_ML, L_WO = 0, 2560, 2816, 3072
LDS_BYTES = L_WO + 32768
W_EPOCH, W_Q, W_O, W_Z, W_Y, W_SIZE = 4, 0x1000, 0x80000, 0x100000, 0x140000, 0x180000
LOG2E = 1.4426950408889634
SPIN = 200000

def bitrev4(j): return ((j&1)<<3)|((j&2)<<1)|((j&4)>>1)|((j&8)>>3)

def gen(D=5, diag=False, DF=1, DW=2, noffn=False, nowo=False, nocomp=False, notail=False, wopol="nt", kpol="nt", vpol="nt", wpol="nt", leak=None):
    a = Asm()
    a.raw(HEADER.rstrip())
    a.raw(f"; @launch grid=({NWG},1,1) block=(320,1,1) lds={LDS_BYTES}")
    a.raw('.amdgcn_target "amdgcn-amd-amdhsa--gfx950"')
    a.raw(".text"); a.raw(f".globl {KN}"); a.raw(".p2align 8"); a.raw(f".type {KN},@function"); a.raw(f"{KN}:")
    FULL = "row_mask:0xf bank_mask:0xf"
    sW = "s3"
    SK, SV, SX, SWT, SWS, SOUT = "s[28:31]", "s[32:35]", "s[36:39]", "s[40:43]", "s[44:47]", "s[48:51]"
    sH, sS, sT, sTag, sCnt = "s52", "s53", "s54", "s55", "s56"
    sMC, sMA = "s[58:59]", "s[60:61]"
    sL2E, sScale = "s62", "s63"
    sSpin = "s57"
    def stamp(k):
        if diag:
            a(f"s_memrealtime s[{70+2*k}:{71+2*k}]")
    def srd(base, lo, size):
        a(f"s_mov_b32 s{base}, s{lo}"); a(f"s_mov_b32 s{base+1}, s{lo+1}")
        a(f"s_mov_b32 s{base+2}, {size}"); a(f"s_mov_b32 s{base+3}, 0x20000")
    def allreduce(op, v, t):
        for r in (8,4,2,1):
            a(f"{op}_dpp {v}, {v}, {v} row_ror:{r} {FULL}")
        a(f"v_mov_b32 {t}, {v}"); a(f"v_permlane16_swap_b32 {v}, {t}"); a(f"{op} {v}, {v}, {t}")
        a(f"v_mov_b32 {t}, {v}"); a(f"v_permlane32_swap_b32 {v}, {t}"); a(f"{op} {v}, {v}, {t}")
    def rowreduce8(acc):
        for e in range(4): a(f"v_permlane32_swap_b32 {acc[e]}, {acc[e+4]}")
        for e in range(4): a(f"v_add_f32 {acc[e]}, {acc[e]}, {acc[e+4]}")
        for e in range(2): a(f"v_permlane16_swap_b32 {acc[e]}, {acc[e+2]}")
        for e in range(2): a(f"v_add_f32 {acc[e]}, {acc[e]}, {acc[e+2]}")
    def ln_stats(x0, t0):
        S, Tm = f"v{t0}", f"v{t0+1}"
        u = [f"v{t0+2+k}" for k in range(10)]
        for k in range(5):
            a(f"v_lshlrev_b32 {u[2*k]}, 16, v{x0+k}")
            a(f"v_and_b32 {u[2*k+1]}, 0xffff0000, v{x0+k}")
        a(f"v_add_f32 {S}, {u[0]}, {u[1]}"); a(f"v_add_f32 {Tm}, {u[2]}, {u[3]}")
        for k in range(4, 10, 2):
            a(f"v_add_f32 {S}, {S}, {u[k]}"); a(f"v_add_f32 {Tm}, {Tm}, {u[k+1]}")
        a(f"v_add_f32 {S}, {S}, {Tm}")
        allreduce("v_add_f32", S, Tm)
        a(f"v_mul_f32 {S}, {f32(1.0/640)}, {S}")
        for k in range(10): a(f"v_sub_f32 {u[k]}, {u[k]}, {S}")
        a(f"v_mul_f32 {Tm}, {u[0]}, {u[0]}"); a(f"v_mul_f32 {u[1]}, {u[1]}, {u[1]}")
        for k in range(2, 10, 2):
            a(f"v_fmac_f32 {Tm}, {u[k]}, {u[k]}"); a(f"v_fmac_f32 {u[1]}, {u[k+1]}, {u[k+1]}")
        a(f"v_add_f32 {Tm}, {Tm}, {u[1]}")
        allreduce("v_add_f32", Tm, u[0])
        a(f"v_mul_f32 {Tm}, {f32(1.0/640)}, {Tm}")
        a(f"v_cvt_pk_bf16_f32 {S}, 0, {S}")
        a(f"v_cvt_pk_bf16_f32 {Tm}, 0, {Tm}")
        a(f"v_add_f32 {Tm}, {f32(1e-5)}, {Tm}")
        a(f"v_cvt_pk_bf16_f32 {Tm}, 0, {Tm}")
        a(f"v_sqrt_f32 {Tm}, {Tm}")
        a(f"v_cvt_pk_bf16_f32 {Tm}, 0, {Tm}")
        a(f"v_rcp_f32 {u[0]}, {Tm}")
    def ln_apply(xr, t0, lo, hi, tmp):
        a(f"v_lshlrev_b32 {xr}, 16, {xr}")
        a(f"v_sub_f32 {xr}, {xr}, v{t0}")
        a(f"v_cvt_pk_bf16_f32 {xr}, 0, {xr}")
        a(f"v_mul_f32 {tmp}, {xr}, v{t0+2}")
        a(f"v_fma_f32 {xr}, -{tmp}, v{t0+1}, {xr}")
        a(f"v_fmac_f32 {tmp}, {xr}, v{t0+2}")
        a(f"v_cvt_pk_bf16_f32 {hi}, 0, {tmp}")
        a(f"v_cvt_pk_bf16_f32 {lo}, {tmp}, 0")
    def gemv_load(acc, lo, hi, r, lane):
        for e in range(4):
            a(f"v_dot2c_f32_bf16_dpp {acc[2*e]}, {lo}, v{r+e} row_newbcast:{lane} {FULL}")
            a(f"v_dot2c_f32_bf16_dpp {acc[2*e+1]}, {hi}, v{r+e} row_newbcast:{lane} {FULL}")
    def tagcheck(tags, T, mn, mx):
        a(f"v_min3_u32 {mn}, {tags[0]}, {tags[1]}, {T}"); a(f"v_max3_u32 {mx}, {tags[0]}, {tags[1]}, {T}")
        for k in range(2, len(tags), 2):
            a(f"v_min3_u32 {mn}, {tags[k]}, {tags[k+1]}, {mn}"); a(f"v_max3_u32 {mx}, {tags[k]}, {tags[k+1]}, {mx}")
        a(f"v_cmp_ne_u32 vcc, {mn}, {mx}")
    def retry(label, done):
        a(f"s_cbranch_vccz {done}")
        a("s_mov_b64 exec, vcc")
        a(f"s_sub_u32 {sSpin}, {sSpin}, 1")
        a(f"s_cmp_gt_i32 {sSpin}, 0")
        a(f"s_cbranch_scc1 {label}")
        a.label(done)
        a("s_mov_b64 exec, -1")

    ACC = [f"v{10+e}" for e in range(8)]
    vM, vL, vPlo, vPhi = "v18", "v19", "v20", "v21"
    KR, VR = 32, 96
    voff = ["v2","v3","v4","v5"]
    def issue(i, sbase):
        t, j = i//16, i%16
        r = (KR if t == 0 else VR) + 4*j
        a(f"buffer_load_dwordx4 v[{r}:{r+3}], {voff[j//4]}, {SK if t==0 else SV}, {sbase} offen offset:{(j%4)*1024} {kpol if t==0 else vpol}")

    stamp(0)
    a("s_load_dwordx16 s[4:19], s[0:1], 0")
    a("s_load_dwordx8 s[20:27], s[0:1], 64")
    a(f"s_cmp_ge_u32 s2, {NWG}")
    a("s_cbranch_scc1 L_end")
    a("v_and_b32 v1, 63, v0")
    a("v_lshrrev_b32 v22, 6, v0")
    a("v_lshlrev_b32 v2, 4, v1")
    a(f"v_readfirstlane_b32 {sW}, v22")
    a("v_lshlrev_b32 v22, 2, v1")
    a("v_lshrrev_b32 v6, 4, v1")
    a("v_and_b32 v7, 15, v1")
    a(f"s_mov_b32 {sSpin}, {SPIN}")
    a(f"s_mov_b32 {sL2E}, {f32(LOG2E)}")
    a(f"s_cmp_ge_u32 s2, {NATT}")
    a("s_cbranch_scc1 L_ffn")
    a("v_add_u32 v3, 4096, v2"); a("v_add_u32 v4, 32768, v2"); a("v_add_u32 v5, 36864, v2")
    a(f"s_lshr_b32 {sH}, s2, 3"); a(f"s_and_b32 {sS}, s2, 7")
    a(f"s_cmp_eq_u32 {sW}, 4")
    a("s_cbranch_scc1 L_helper")
    a(f"s_lshl_b32 {sT}, s2, 20"); a(f"s_lshl_b32 s66, {sW}, 13"); a(f"s_add_u32 {sT}, {sT}, s66")
    a("s_waitcnt lgkmcnt(0)")
    srd(28, 6, "0x10000000")
    for i in range(D): issue(i, sT)
    a(f"s_load_dword {sTag}, s[26:27], {W_EPOCH}")
    srd(32, 8, "0x10000000"); srd(44, 26, W_SIZE)
    a("s_mov_b32 s58, 0xcccccccc"); a("s_mov_b32 s59, 0xcccccccc")
    a("s_mov_b32 s60, 0xaaaaaaaa"); a("s_mov_b32 s61, 0xaaaaaaaa")
    a(f"s_mov_b32 {sScale}, {f32(128**-0.5)}")
    a("v_lshlrev_b32 v166, 5, v7"); a("v_lshl_add_u32 v166, v6, 3, v166")
    a(f"s_lshl_b32 s66, {sW}, 9"); a("v_add_u32 v166, s66, v166")
    a("v_lshlrev_b32 v167, 4, v7")
    for e in range(8): a(f"v_mov_b32 {ACC[e]}, 0")
    a(f"v_mov_b32 {vM}, {f32(-3.0e38)}"); a(f"v_mov_b32 {vL}, 0")
    a(f"s_mov_b32 {sCnt}, 0")
    for i in range(D, 32):
        a(f"s_waitcnt vmcnt({D-1})")
        if i == D: stamp(2)
        issue(i, sT)
    stamp(3)
    a("s_barrier")
    a(f"ds_read_b128 v[6:9], v167 offset:{L_Q}")
    stamp(4)
    a("s_waitcnt lgkmcnt(0)")
    a(f"s_add_u32 {sTag}, {sTag}, 1")
    a.label("L_loop")
    a(f"s_add_u32 {sT}, {sT}, 65536")
    a(f"s_cmp_eq_u32 {sCnt}, 15")
    a("s_cselect_b32 s30, 0, s30"); a("s_cselect_b32 s34, 0, s34")
    A_ = ["v22","v23"]; B_ = ["v24","v25"]; C_ = ["v26","v27"]; D_ = ["v28","v29"]; T0, T1 = "v30", "v31"
    for j in range(16):
        r = KR + 4*j; t = A_[j&1]
        a(f"v_dot2_f32_bf16 {t}, v{r}, v6, 0")
        for e in range(1,4): a(f"v_dot2_f32_bf16 {t}, v{r+e}, v{6+e}, {t}")
        a(f"s_waitcnt vmcnt({D-1})")
        issue(j, sT)
        if j & 1:
            b = B_[(j>>1)&1]
            a(f"v_add_f32_dpp {b}, {A_[0]}, {A_[0]} row_ror:8 row_mask:0xf bank_mask:0x3")
            a(f"v_add_f32_dpp {b}, {A_[1]}, {A_[1]} row_ror:8 row_mask:0xf bank_mask:0xc")
            if j & 2:
                c = C_[(j>>2)&1]
                a(f"v_add_f32_dpp {c}, {B_[0]}, {B_[0]} row_half_mirror row_mask:0xf bank_mask:0x5")
                a(f"v_add_f32_dpp {c}, {B_[1]}, {B_[1]} row_half_mirror row_mask:0xf bank_mask:0xa")
                if j & 4:
                    d = D_[(j>>3)&1]
                    a(f"v_add_f32_dpp {T0}, {C_[0]}, {C_[0]} quad_perm:[2,3,0,1] {FULL}")
                    a(f"v_add_f32_dpp {T1}, {C_[1]}, {C_[1]} quad_perm:[2,3,0,1] {FULL}")
                    a(f"v_cndmask_b32 {d}, {T0}, {T1}, {sMC}")
    a(f"v_add_f32_dpp {T0}, {D_[0]}, {D_[0]} quad_perm:[1,0,3,2] {FULL}")
    a(f"v_add_f32_dpp {T1}, {D_[1]}, {D_[1]} quad_perm:[1,0,3,2] {FULL}")
    S = "v22"; MX = "v23"; AL = "v24"
    a(f"v_cndmask_b32 {S}, {T0}, {T1}, {sMA}")
    a(f"v_cvt_pk_bf16_f32 {S}, 0, {S}")
    a(f"v_mul_f32 {S}, {sScale}, {S}")
    a(f"v_cvt_pk_bf16_f32 {S}, 0, {S}")
    a(f"v_max_f32 {MX}, {S}, {vM}")
    allreduce("v_max_f32", MX, T0)
    a(f"v_sub_f32 {S}, {S}, {MX}"); a(f"v_sub_f32 {AL}, {vM}, {MX}")
    a(f"v_mul_f32 {S}, {sL2E}, {S}"); a(f"v_mul_f32 {AL}, {sL2E}, {AL}")
    a(f"v_exp_f32 {S}, {S}"); a(f"v_exp_f32 {AL}, {AL}")
    a(f"v_mov_b32 {vM}, {MX}")
    a(f"v_cvt_pk_bf16_f32 {vPhi}, 0, {S}"); a(f"v_cvt_pk_bf16_f32 {vPlo}, {S}, 0")
    for e in range(8): a(f"v_mul_f32 {ACC[e]}, {ACC[e]}, {AL}")
    a(f"v_fma_f32 {vL}, {vL}, {AL}, {vPhi}")
    for j in range(16):
        if not nocomp: gemv_load(ACC, vPlo, vPhi, VR+4*j, bitrev4(j))
        a(f"s_waitcnt vmcnt({D-1})")
        issue(16+j, sT)
    a(f"s_add_u32 {sCnt}, {sCnt}, 1")
    a(f"s_cmp_lt_u32 {sCnt}, 16")
    a("s_cbranch_scc1 L_loop")
    stamp(5)
    if notail: a("s_branch L_fin")
    rowreduce8(ACC)
    a(f"ds_write_b64 v166, v[10:11] offset:{L_PART}")
    allreduce("v_add_f32", vL, T0)
    a(f"v_mul_f32 {vM}, {sL2E}, {vM}")
    a(f"s_lshl_b32 s66, {sW}, 3"); a("v_mov_b32 v22, s66")
    a(f"ds_write_b64 v22, v[18:19] offset:{L_ML}")
    a("v_lshlrev_b32 v23, 3, v1")
    a("v_mov_b32 v24, 0")
    a(f"s_lshl_b32 s66, s2, 11"); a(f"s_add_u32 s66, s66, {W_O}")
    a("s_waitcnt vmcnt(0) lgkmcnt(0)")
    a("s_barrier")
    a(f"s_cmp_lg_u32 {sW}, 0")
    a("s_cbranch_scc1 L_hop1")
    a(f"ds_read_b128 v[104:107], v24 offset:{L_ML}"); a(f"ds_read_b128 v[108:111], v24 offset:{L_ML+16}")
    for w in range(4): a(f"ds_read_b64 v[{112+2*w}:{113+2*w}], v23 offset:{L_PART+512*w}")
    a(f"v_mov_b32 v121, {sTag}"); a(f"v_mov_b32 v123, {sTag}"); a(f"v_mov_b32 v125, {sTag}"); a(f"v_mov_b32 v127, {sTag}")
    a("s_waitcnt lgkmcnt(4)")
    a("v_max3_f32 v124, v104, v106, v108"); a("v_max_f32 v124, v124, v110")
    for w in range(4): a(f"v_sub_f32 v{104+2*w}, v{104+2*w}, v124")
    for w in range(4): a(f"v_exp_f32 v{104+2*w}, v{104+2*w}")
    a("s_waitcnt lgkmcnt(0)")
    a("v_mul_f32 v120, v104, v112"); a("v_mul_f32 v122, v104, v113"); a("v_mul_f32 v126, v104, v105")
    for w in range(1,4):
        a(f"v_fmac_f32 v120, v{104+2*w}, v{112+2*w}"); a(f"v_fmac_f32 v122, v{104+2*w}, v{113+2*w}")
        a(f"v_fmac_f32 v126, v{104+2*w}, v{105+2*w}")
    a(f"buffer_store_dwordx4 v[120:123], v2, {SWS}, s66 offen sc1")
    a("s_mov_b64 exec, 1")
    a(f"buffer_store_dwordx4 v[124:127], v2, {SWS}, s66 offen offset:1024 sc1")
    a("s_mov_b64 exec, -1")
    a.label("L_hop1")
    stamp(6)
    a(f"s_cmp_ge_u32 {sS}, 5")
    a("s_cbranch_scc1 L_red")
    a(f"s_lshl_b32 s66, {sW}, 13"); a("v_add_u32 v22, s66, v2")
    for q in range(8): a(f"ds_read_b128 v[{32+4*q}:{35+4*q}], v22 offset:{L_WO+1024*q}")
    a("v_and_b32 v23, 3, v1"); a("v_lshlrev_b32 v24, 12, v23")
    a("v_lshrrev_b32 v25, 2, v1"); a("v_lshl_add_u32 v25, v25, 6, v24")
    a(f"s_lshl_b32 s66, {sH}, 14"); a(f"s_add_u32 s66, s66, {W_O}")
    a("v_lshrrev_b32 v26, 4, v1"); a("v_lshlrev_b32 v26, 4, v26"); a("v_lshl_add_u32 v26, v23, 11, v26")
    a(f"s_lshl_b32 s67, {sS}, 2"); a(f"s_add_u32 s67, s67, {sW}"); a("s_lshl_b32 s67, s67, 13")
    a(f"s_lshl_b32 s68, {sH}, 6"); a("s_add_u32 s67, s67, s68"); a(f"s_add_u32 s67, s67, {W_Z}")
    a.label("L_poll1")
    a(f"buffer_load_dwordx4 v[96:99], v24, {SWS}, s66 offen offset:1024 sc1")
    a(f"buffer_load_dwordx4 v[100:103], v24, {SWS}, s66 offen offset:3072 sc1")
    for p in range(2):
        for k in range(4):
            r = 64 + 16*p + 4*k
            a(f"buffer_load_dwordx4 v[{r}:{r+3}], v25, {SWS}, s66 offen offset:{2048*p+16*k} sc1")
    a("s_waitcnt vmcnt(0)")
    tagcheck([f"v{r}" for r in range(65, 104, 2)], sTag, "v27", "v28")
    retry("L_poll1", "L_got1")
    stamp(7)
    a("v_max_f32 v27, v96, v100")
    a(f"v_max_f32_dpp v27, v27, v27 quad_perm:[1,0,3,2] {FULL}")
    a(f"v_max_f32_dpp v27, v27, v27 quad_perm:[2,3,0,1] {FULL}")
    a("v_sub_f32 v96, v96, v27"); a("v_sub_f32 v100, v100, v27")
    a("v_exp_f32 v96, v96"); a("v_exp_f32 v100, v100")
    a("v_mul_f32 v28, v96, v98"); a("v_fmac_f32 v28, v100, v102")
    for k in range(8): a(f"v_mul_f32 v{64+2*k}, v96, v{64+2*k}")
    a(f"v_add_f32_dpp v28, v28, v28 quad_perm:[1,0,3,2] {FULL}")
    for k in range(8): a(f"v_fmac_f32 v{64+2*k}, v100, v{80+2*k}")
    a(f"v_add_f32_dpp v28, v28, v28 quad_perm:[2,3,0,1] {FULL}")
    for k in range(8): a(f"v_add_f32_dpp v{64+2*k}, v{64+2*k}, v{64+2*k} quad_perm:[1,0,3,2] {FULL}")
    a("v_rcp_f32 v28, v28")
    for k in range(8): a(f"v_add_f32_dpp v{64+2*k}, v{64+2*k}, v{64+2*k} quad_perm:[2,3,0,1] {FULL}")
    for k in range(8): a(f"v_mul_f32 v{64+2*k}, v28, v{64+2*k}")
    for kp in range(4): a(f"v_cvt_pk_bf16_f32 v{96+kp}, v{64+4*kp}, v{66+4*kp}")
    a("s_waitcnt lgkmcnt(0)")
    Z = ["v10","v12","v14","v15","v16","v17","v18","v19"]
    for kp in range(4):
        for e in range(8):
            a(f"v_dot2_f32_bf16 {Z[e]}, v{32+8*kp+e}, v{96+kp}, {'0' if kp==0 else Z[e]}")
    a(f"v_mov_b32 v11, {sTag}"); a(f"v_mov_b32 v13, {sTag}")
    rowreduce8(Z)
    for r in (8,4):
        a(f"v_add_f32_dpp v10, v10, v10 row_ror:{r} {FULL}")
        a(f"v_add_f32_dpp v12, v12, v12 row_ror:{r} {FULL}")
    a("s_mov_b32 exec_lo, 0x000f000f"); a("s_mov_b32 exec_hi, 0x000f000f")
    a(f"buffer_store_dwordx4 v[10:13], v26, {SWS}, s67 offen sc1")
    a("s_mov_b64 exec, -1")
    a("s_branch L_fin")

    a.label("L_helper")
    a("v_lshl_add_u32 v8, v7, 2, v6"); a("v_lshlrev_b32 v8, 1, v8")
    a("v_lshlrev_b32 v9, 4, v7"); a("v_lshl_add_u32 v9, v6, 13, v9")
    a(f"s_mul_i32 s64, {sS}, 80")
    a("s_lshl_b32 s65, s64, 1")
    a("s_lshl_b32 s64, s64, 13"); a(f"s_lshl_b32 s66, {sH}, 8"); a("s_add_u32 s64, s64, s66")
    a("s_waitcnt lgkmcnt(0)")
    srd(36, 4, 1280); srd(40, 10, 640*4096*2)
    for k in range(5): a(f"buffer_load_dword v{160+k}, v22, {SX}, 0 offen offset:{256*k}")
    a(f"buffer_load_ushort v165, v8, {SX}, s65 offen")
    a(f"buffer_load_ushort v166, v8, {SX}, s65 offen offset:128")
    for k in range(20):
        r = 32 + 4*k
        a(f"buffer_load_dwordx4 v[{r}:{r+3}], v9, {SWT}, s64 offen {wpol}")
        if k < 19: a("s_add_u32 s64, s64, 32768")
    a(f"s_load_dword {sTag}, s[26:27], {W_EPOCH}")
    stamp(4)
    srd(44, 26, W_SIZE)
    QA = ["v24","v26","v10","v11","v12","v13","v14","v15"]
    for e in range(8): a(f"v_mov_b32 {QA[e]}, 0")
    a("v_lshlrev_b32 v23, 6, v7"); a("v_lshl_add_u32 v23, v6, 4, v23")
    a(f"s_lshl_b32 s66, s2, 10"); a(f"s_add_u32 s66, s66, {W_Q}")
    a(f"s_lshl_b32 s67, {sH}, 13"); a(f"s_add_u32 s67, s67, {W_Q}")
    a("s_waitcnt vmcnt(22)")
    stamp(5)
    ln_stats(160, 140)
    a("s_waitcnt vmcnt(20)")
    ln_apply("v165", 140, "v16", "v17", "v22")
    ln_apply("v166", 140, "v18", "v19", "v22")
    stamp(6)
    for k in range(20):
        a(f"s_waitcnt vmcnt({19-k})")
        gemv_load(QA, "v16" if k < 16 else "v18", "v17" if k < 16 else "v19", 32+4*k, k & 15)
    a("s_waitcnt lgkmcnt(0)")
    a(f"s_add_u32 {sTag}, {sTag}, 1")
    rowreduce8(QA)
    a(f"v_mov_b32 v25, {sTag}"); a(f"v_mov_b32 v27, {sTag}")
    a(f"buffer_store_dwordx4 v[24:27], v23, {SWS}, s66 offen sc1")
    stamp(2)
    a.label("L_pollq")
    for p in range(8):
        a(f"buffer_load_dwordx4 v[{32+4*p}:{35+4*p}], {voff[p//4]}, {SWS}, s67 offen offset:{(p%4)*1024} sc1")
    a("s_waitcnt vmcnt(0)")
    tagcheck([f"v{r}" for r in range(33, 64, 2)], sTag, "v28", "v29")
    retry("L_pollq", "L_gotq")
    for st in (16, 8, 4):
        for r in range(32, 32+st, 2):
            a(f"v_add_f32 v{r}, v{r}, v{r+st}")
    a("v_cvt_pk_bf16_f32 v10, v32, v34")
    a("v_lshlrev_b32 v22, 2, v1")
    a(f"ds_write_b32 v22, v10 offset:{L_Q}")
    a("s_waitcnt lgkmcnt(0)")
    stamp(3)
    a("s_barrier")
    a(f"s_cmp_ge_u32 {sS}, 5")
    a("s_cbranch_scc1 L_fin")
    if nowo: a("s_branch L_fin")
    srd(40, 12, 4096*640*2)
    a("v_mul_u32_u24 v22, 2560, v6"); a("v_lshl_add_u32 v22, v7, 4, v22")
    a(f"s_mul_i32 s66, {sH}, {128*1280}"); a(f"s_lshl_b32 s67, {sS}, 8"); a("s_add_u32 s66, s66, s67")
    for k in range(16):
        for u in range(2):
            r = 32 + 8*k + 4*u
            if 2*k+u >= DW: a(f"s_waitcnt vmcnt({DW-1})")
            a(f"buffer_load_dwordx4 v[{r}:{r+3}], v22, {SWT}, s66 offen offset:{1280*u} {wopol}")
        if k < 15: a("s_add_u32 s66, s66, 10240")
    a("s_mov_b32 s66, 0x05040100"); a("s_mov_b32 s67, 0x07060302")
    a("v_lshrrev_b32 v24, 2, v7"); a("v_lshlrev_b32 v24, 13, v24"); a("v_lshl_add_u32 v24, v6, 11, v24")
    a("v_and_b32 v25, 3, v7"); a("v_lshl_add_u32 v24, v25, 4, v24")
    a("s_waitcnt vmcnt(0)")
    for k in range(16):
        ra = 32 + 8*k; rb = ra + 4
        o = 8 + 8*(k&1)
        for u in range(4):
            a(f"v_perm_b32 v{o+2*u}, v{rb+u}, v{ra+u}, s66")
            a(f"v_perm_b32 v{o+2*u+1}, v{rb+u}, v{ra+u}, s67")
        a(f"ds_write_b128 v24, v[{o}:{o+3}] offset:{L_WO+64*k}")
        a(f"ds_write_b128 v24, v[{o+4}:{o+7}] offset:{L_WO+64*k+1024}")
        if k & 1: a("s_waitcnt lgkmcnt(0)")
    a("s_branch L_fin")

    a.label("L_ffn")
    if noffn:
        a("s_waitcnt lgkmcnt(0)"); a("s_branch L_fin")
    sF = sH
    a(f"s_sub_u32 {sF}, s2, {NATT}")
    a("v_lshl_add_u32 v8, v7, 2, v6"); a("v_lshlrev_b32 v8, 1, v8")
    a(f"s_lshl_b32 s65, {sW}, 8")
    a("v_cmp_gt_u32 vcc, 8, v7")
    a("v_and_b32 v9, 7, v7"); a("v_lshlrev_b32 v9, 4, v9")
    a("v_mul_u32_u24 v23, 3456, v6"); a("v_add_u32 v9, v9, v23")
    a(f"s_mul_i32 s64, {sW}, {128*3456}"); a(f"s_lshl_b32 s66, {sF}, 7"); a("s_add_u32 s64, s64, s66")
    a("v_add_u32 v9, s64, v9")
    a("s_waitcnt lgkmcnt(0)")
    a(f"s_load_dword {sTag}, s[26:27], {W_EPOCH}")
    srd(36, 4, 1280)
    for k in range(5): a(f"buffer_load_dword v{160+k}, v22, {SX}, 0 offen offset:{256*k}")
    a(f"buffer_load_ushort v165, v8, {SX}, s65 offen")
    a(f"buffer_load_ushort v166, v8, {SX}, s65 offen offset:128")
    a("v_mov_b32 v24, s18"); a("v_mov_b32 v25, s19"); a("v_mov_b32 v26, s16"); a("v_mov_b32 v27, s17")
    a("v_cndmask_b32 v24, v24, v26, vcc"); a("v_cndmask_b32 v25, v25, v27, vcc")
    a("v_add_co_u32 v24, vcc, v24, v9"); a("v_addc_co_u32 v25, vcc, 0, v25, vcc")
    a(f"s_mov_b32 s66, {4*3456}"); a("s_mov_b32 s67, 0")
    for k in range(32):
        r = 32 + 4*k
        if k >= DF: a(f"s_waitcnt vmcnt({DF-1})")
        a(f"global_load_dwordx4 v[{r}:{r+3}], v[24:25], off {wpol}")
        if k < 31: a("v_lshl_add_u64 v[24:25], v[24:25], 0, s[66:67]")
    srd(40, 20, 1728*640*2); srd(44, 26, W_SIZE)
    a("s_waitcnt vmcnt(34)")
    ln_stats(160, 10)
    a("s_waitcnt vmcnt(32)")
    ln_apply("v165", 10, "v22", "v23", "v26")
    ln_apply("v166", 10, "v24", "v25", "v26")
    for e in range(8): a(f"v_mov_b32 {ACC[e]}, 0")
    for k in range(32):
        a(f"s_waitcnt vmcnt({31-k})")
        gemv_load(ACC, "v22" if k < 16 else "v24", "v23" if k < 16 else "v25", 32+4*k, k & 15)
    a("v_mul_u32_u24 v26, 1280, v6"); a("v_lshl_add_u32 v26, v7, 4, v26")
    a(f"s_mul_i32 s64, {sF}, {64*1280}"); a(f"s_lshl_b32 s66, {sW}, 8"); a("s_add_u32 s64, s64, s66")
    for k in range(16):
        r = 32 + 4*k
        if k >= DF: a(f"s_waitcnt vmcnt({DF-1})")
        a(f"buffer_load_dwordx4 v[{r}:{r+3}], v26, {SWT}, s64 offen {wpol}")
        if k < 15: a("s_add_u32 s64, s64, 5120")
    rowreduce8(ACC)
    a("v_lshlrev_b32 v27, 5, v7"); a("v_lshl_add_u32 v27, v6, 3, v27")
    a(f"s_lshl_b32 s66, {sW}, 9"); a("v_add_u32 v28, s66, v27")
    a(f"ds_write_b64 v28, v[10:11] offset:{L_PART}")
    a("v_lshlrev_b32 v29, 1, v8")
    a("s_waitcnt lgkmcnt(0)")
    a("s_barrier")
    a(f"s_add_u32 {sTag}, {sTag}, 1")
    for w in range(5):
        a(f"ds_read_b32 v{10+w}, v29 offset:{L_PART+512*w}")
        a(f"ds_read_b32 v{15+w}, v29 offset:{L_PART+512*w+256}")
    a("s_waitcnt lgkmcnt(0)")
    for b in (10, 15):
        a(f"v_add_f32 v{b}, v{b}, v{b+1}"); a(f"v_add_f32 v{b+2}, v{b+2}, v{b+3}")
        a(f"v_add_f32 v{b}, v{b}, v{b+4}"); a(f"v_add_f32 v{b}, v{b}, v{b+2}")
        a(f"v_cvt_pk_bf16_f32 v{b}, 0, v{b}")
    a("v_mul_f32 v11, v10, v10"); a("v_mul_f32 v11, v11, v10")
    a(f"v_mov_b32 v12, {f32(0.044715)}"); a("v_fma_f32 v11, v11, v12, v10")
    a(f"v_mul_f32 v11, {f32(-2.0*0.7978845608028654*LOG2E)}, v11")
    a("v_exp_f32 v11, v11"); a("v_add_f32 v11, 1.0, v11"); a("v_rcp_f32 v11, v11")
    a("v_mul_f32 v10, v10, v11"); a("v_cvt_pk_bf16_f32 v10, 0, v10")
    a("v_mul_f32 v10, v10, v15")
    a("v_cvt_pk_bf16_f32 v23, 0, v10"); a("v_cvt_pk_bf16_f32 v22, v10, 0")
    Y = ["v10","v12","v14","v15","v16","v17","v18","v19"]
    for e in range(8): a(f"v_mov_b32 {Y[e]}, 0")
    for k in range(16):
        a(f"s_waitcnt vmcnt({15-k})")
        gemv_load(Y, "v22", "v23", 32+4*k, k)
    a(f"v_mov_b32 v11, {sTag}"); a(f"v_mov_b32 v13, {sTag}")
    rowreduce8(Y)
    a("v_lshlrev_b32 v26, 11, v7"); a("v_lshl_add_u32 v26, v6, 4, v26")
    a(f"s_lshl_b32 s64, {sW}, 15"); a(f"s_lshl_b32 s66, {sF}, 6"); a("s_add_u32 s64, s64, s66"); a(f"s_add_u32 s64, s64, {W_Y}")
    a(f"buffer_store_dwordx4 v[10:13], v26, {SWS}, s64 offen sc1")
    stamp(2)
    a("s_branch L_fin")
    a.label("L_red")
    if noffn: a("s_branch L_fin")
    sOct = sT
    a(f"s_cmp_lg_u32 {sS}, 7"); a("s_cbranch_scc1 L_fin")
    a(f"s_cmp_ge_u32 {sH}, 20"); a("s_cbranch_scc1 L_fin")
    a(f"s_lshl_b32 {sOct}, {sH}, 2"); a(f"s_add_u32 {sOct}, {sOct}, {sW}")
    srd(36, 4, 1280); srd(48, 22, 1280)
    a("v_lshrrev_b32 v6, 4, v1")
    a("v_and_b32 v27, 1, v1"); a("v_lshl_add_u32 v27, v27, 2, v6"); a("v_lshlrev_b32 v27, 1, v27")
    a(f"s_lshl_b32 s65, {sOct}, 4")
    a(f"buffer_load_ushort v28, v27, {SX}, s65 offen")
    a("v_lshlrev_b32 v20, 5, v1")
    a(f"v_mov_b32 v21, {sTag}")
    a("v_cmp_gt_u32 vcc, 54, v1")
    a("v_mov_b32 v29, 0x7f000000")
    a("v_cndmask_b32 v22, v29, v20, vcc"); a("v_cndmask_b32 v23, 0, v21, vcc")
    a(f"s_lshl_b32 s64, {sOct}, 11"); a(f"s_add_u32 s64, s64, {W_Y}")
    a(f"s_mov_b32 {sCnt}, 0")
    a("v_mov_b32 v31, 0")
    a.label("L_poll2")
    a(f"buffer_load_dwordx4 v[32:35], v22, {SWS}, s64 offen sc1")
    a(f"buffer_load_dwordx4 v[36:39], v22, {SWS}, s64 offen offset:16 sc1")
    a("s_waitcnt vmcnt(0)")
    tagcheck(["v33","v35","v37","v39"], "v23", "v24", "v25")
    retry("L_poll2", "L_got2")
    a("v_permlane32_swap_b32 v32, v36"); a("v_permlane32_swap_b32 v34, v38")
    a("v_add_f32 v32, v32, v36"); a("v_add_f32 v34, v34, v38")
    a("v_permlane16_swap_b32 v32, v34")
    a("v_add_f32 v32, v32, v34")
    a(f"v_add_f32_dpp v32, v32, v32 quad_perm:[2,3,0,1] {FULL}")
    a(f"v_add_f32_dpp v32, v32, v32 row_ror:8 {FULL}")
    a(f"v_add_f32_dpp v32, v32, v32 row_ror:4 {FULL}")
    a("v_cvt_pk_bf16_f32 v32, 0, v32")
    a(f"s_cmp_eq_u32 {sCnt}, 1")
    a("s_cbranch_scc1 L_final")
    a(f"v_mul_f32 v33, {f32(-LOG2E)}, v32")
    a("v_exp_f32 v33, v33"); a("v_add_f32 v33, 1.0, v33"); a("v_rcp_f32 v33, v33")
    a("v_mul_f32 v30, v32, v33"); a("v_cvt_pk_bf16_f32 v30, 0, v30")
    a("v_lshlrev_b32 v28, 16, v28")
    a("v_mov_b32 v22, v20"); a("v_mov_b32 v23, v21")
    a(f"s_lshl_b32 s64, {sOct}, 11"); a(f"s_add_u32 s64, s64, {W_Z}")
    a(f"s_mov_b32 {sCnt}, 1")
    a("s_branch L_poll2")
    a.label("L_final")
    stamp(7)
    a("v_mul_f32 v32, v32, v30"); a("v_cvt_pk_bf16_f32 v32, 0, v32")
    a("v_add_f32 v32, v28, v32"); a("v_cvt_pk_bf16_f32 v32, v32, 0")
    a("s_mov_b32 exec_lo, 0x00030003"); a("s_mov_b32 exec_hi, 0x00030003")
    a(f"buffer_store_short v32, v27, {SOUT}, s65 offen")
    a(f"s_cmp_lg_u32 {sOct}, 0")
    a("s_cbranch_scc1 L_fin")
    a("s_mov_b64 exec, 1")
    a(f"buffer_store_dword v21, v31, {SWS}, 0 offen offset:{W_EPOCH} sc1")
    a.label("L_fin")
    if leak is not None:
        a("s_cmp_lg_u32 s2, 7"); a("s_cbranch_scc1 L_end")
        a(f"s_cmp_lg_u32 {sW}, 0"); a("s_cbranch_scc1 L_end")
        a("s_waitcnt vmcnt(0) lgkmcnt(0)")
        a(f"s_sub_u32 s66, s{70+2*leak}, s70"); a("s_lshl_b32 s66, s66, 2"); a("s_add_u32 s66, s66, 20000")
        a.label("L_leak")
        a("s_memrealtime s[86:87]"); a("s_waitcnt lgkmcnt(0)")
        a("s_sub_u32 s67, s86, s70"); a("s_cmp_lt_u32 s67, s66"); a("s_cbranch_scc1 L_leak")
    elif diag:
        a("s_mov_b64 exec, -1")
        a("s_waitcnt vmcnt(0)")
        stamp(1)
        a("s_add_u32 s44, s26, 0x20000000"); a("s_addc_u32 s45, s27, 0"); a("s_mov_b32 s46, 0x100000"); a("s_mov_b32 s47, 0x20000")
        a("s_mul_i32 s66, s2, 5"); a(f"s_add_u32 s66, s66, {sW}"); a("s_lshl_b32 s66, s66, 6")
        a("s_waitcnt lgkmcnt(0)")
        for k in range(16): a(f"v_mov_b32 v{32+k}, s{70+k}")
        a("v_mov_b32 v31, 0")
        a("s_mov_b64 exec, 1")
        for k in range(4): a(f"buffer_store_dwordx4 v[{32+4*k}:{35+4*k}], v31, s[44:47], s66 offen offset:{16*k}")
    a.label("L_end")
    a("s_endpgm")
    a.raw('.section .rodata,"a"'); a.raw(".p2align 6"); a.raw(f".amdhsa_kernel {KN}")
    a.raw("  .amdhsa_next_free_vgpr 168"); a.raw(f"  .amdhsa_next_free_sgpr {88 if diag else 72}"); a.raw("  .amdhsa_accum_offset 168")
    a.raw("  .amdhsa_group_segment_fixed_size 0"); a.raw("  .amdhsa_kernarg_size 96"); a.raw("  .amdhsa_user_sgpr_count 2")
    a.raw("  .amdhsa_user_sgpr_kernarg_segment_ptr 1"); a.raw("  .amdhsa_system_sgpr_workgroup_id_x 1")
    a.raw("  .amdhsa_float_denorm_mode_32 3")
    a.raw(".end_amdhsa_kernel")
    return a

if __name__ == "__main__":
    from build import build
    import sys
    outs = []
    def mk(name, **kw):
        a = gen(**kw); open(name+".s","w").write(a.text()); build(name+".s"); outs.append(name+".co")
    mk("e2_noffn_nowo", D=5, diag=True, noffn=True, nowo=True)
    mk("e2_noffn_dw2", D=5, diag=True, noffn=True, DW=2)
    mk("e2_noffn_dw32", D=5, diag=True, noffn=True, DW=32)
    mk("e2_df1_dw2", D=5, diag=True, DF=1, DW=2)
    mk("e2_df2_dw4", D=5, diag=True, DF=2, DW=4)
    mk("e2_df4_dw32", D=5, diag=True, DF=4, DW=32)
    mk("e2_d6_df2_dw4", D=6, diag=True, DF=2, DW=4)
    open("list.txt","w").write(",".join(outs))
    print(json.dumps(["work/bench_host","work/tl.py","work/list.txt"]+["work/"+o for o in outs]))
```
